```python
import torch

def _softmax(x, axis=-1):
    return torch.softmax(x, dim=axis)
def _gelu(x):
    return torch.nn.functional.gelu(x, approximate="tanh")
def _silu(x):
    return torch.nn.functional.silu(x)
def _sigmoid(x):
    return torch.sigmoid(x)
def _layernorm(x, axis=-1, eps=1e-5):
    m = x.mean(dim=axis, keepdim=True)
    v = x.var(dim=axis, keepdim=True, unbiased=False)
    return (x - m) / torch.sqrt(v + eps)
def _scatter_add(tgt, idx, src, axis=0):
    return tgt.clone().index_add_(axis, idx, src)
def _segment_sum(src, seg, n):
    out = torch.zeros((n,) + src.shape[1:], dtype=src.dtype)
    return out.index_add_(0, seg, src)
def _pad(x, pw):
    flat = tuple(v for pair in reversed(pw) for v in pair)
    return torch.nn.functional.pad(x, flat)

kernel_name = 'parallel_sum__sliding_block_cached__glu_gated_glu__decode'

def setup_inputs():

    _w = (lambda a: (lambda t: t.to(torch.bfloat16) if t.is_floating_point() else t)(torch.as_tensor(a)))
    def _A_setup():
        B, Sq, D = 1, 1, 640
        Hq, Hkv, Sk, Dh = 32, 32, 8192, 128
        assert Hq % Hkv == 0, (Hq, Hkv)
        return {
            "x": _w((lambda *s: torch.randn(*s, dtype=torch.bfloat16) * 0.05)(B, Sq, D)),
            "k_cache": _w((lambda *s: torch.randn(*s, dtype=torch.bfloat16) * 3.2)(B, Hkv, Sk, Dh)),
            "v_cache": _w((lambda *s: torch.randn(*s, dtype=torch.bfloat16) * 1.6)(B, Hkv, Sk, Dh)),
            "wq": _w((lambda *s: torch.randn(*s, dtype=torch.bfloat16) * 3.2)(D, Hq * Dh) * (D ** -0.5)),
            "wo": _w((lambda *s: torch.randn(*s, dtype=torch.bfloat16) * 1.6)(Hq * Dh, D) * ((Hq * Dh) ** -0.5)),
        }
    _A_in = _A_setup()

    def _B_setup():
        B, S, D, F = 1, 1, 640, 1728
        return {
            "x": _w((lambda *s: torch.randn(*s, dtype=torch.bfloat16) * 0.05)(B, S, D)),
            "w_gate": _w((lambda *s: torch.randn(*s, dtype=torch.bfloat16) * 0.05)(D, F)),
            "w_up": _w((lambda *s: torch.randn(*s, dtype=torch.bfloat16) * 0.05)(D, F)),
            "w_down": _w((lambda *s: torch.randn(*s, dtype=torch.bfloat16) * 0.05)(F, D)),
        }
    _B_in = _B_setup()

    return {
        "A_x": _A_in["x"],
        "A_k_cache": _A_in["k_cache"],
        "A_v_cache": _A_in["v_cache"],
        "A_wq": _A_in["wq"],
        "A_wo": _A_in["wo"],
        "B_x": _B_in["x"],
        "B_w_gate": _B_in["w_gate"],
        "B_w_up": _B_in["w_up"],
        "B_w_down": _B_in["w_down"],
    }

def reference(A_x, A_k_cache, A_v_cache, A_wq, A_wo, B_x, B_w_gate, B_w_up, B_w_down):
    def _A_ref(x, k_cache, v_cache, wq, wo):
        B, Sq, D = x.shape
        Hq, Dh = 32, 128
        Hkv, Sk = k_cache.shape[1], k_cache.shape[2]
        W = min(4096, max(256, Sk // 4))
        rep = Hq // Hkv
        q = (lambda x, *d: x.permute(*d))((x @ wq).reshape(B, Sq, Hq, Dh), 0, 2, 1, 3)
        k = (lambda x, n, axis: torch.repeat_interleave(x, n, dim=axis))(k_cache[:, :, Sk - W:, :], rep, axis=1)
        v = (lambda x, n, axis: torch.repeat_interleave(x, n, dim=axis))(v_cache[:, :, Sk - W:, :], rep, axis=1)
        scores = torch.einsum("bhqd,bhkd->bhqk", q, k) * (Dh ** -0.5)
        p = _softmax(scores, axis=-1)
        o = torch.einsum("bhqk,bhkd->bhqd", p, v)
        return (lambda x, *d: x.permute(*d))(o, 0, 2, 1, 3).reshape(B, Sq, Hq * Dh) @ wo

    def _B_ref(x, w_gate, w_up, w_down):
        g = torch.einsum("bsd,df->bsf", x, w_gate)
        u = torch.einsum("bsd,df->bsf", x, w_up)
        h = _sigmoid(g) * u
        return torch.einsum("bsf,fd->bsd", h, w_down)

    x = A_x
    xn = _layernorm(x, axis=-1)
    return x + _A_ref(xn, A_k_cache, A_v_cache, A_wq, A_wo) + _B_ref(xn, B_w_gate, B_w_up, B_w_down)
```

```python
import re
def regs(tok):
    tok = tok.strip().lstrip('-')
    m = re.fullmatch(r'([vs])(\d+)', tok)
    if m: return {(m.group(1), int(m.group(2)))}
    m = re.fullmatch(r'([vs])\[(\d+):(\d+)\]', tok)
    if m: return {(m.group(1), i) for i in range(int(m.group(2)), int(m.group(3)) + 1)}
    if tok == 'vcc': return {('s', 'vcc')}
    if tok == 'exec': return {('s', 'exec')}
    return set()
TRANS = ('v_exp_f32', 'v_log_f32', 'v_rcp_f32', 'v_rsq_f32', 'v_sqrt_f32')
def parse(line):
    line = line.split(';')[0].strip()
    if not line or line.startswith('.') or line.endswith(':'): return None
    p = line.split(None, 1); op = p[0]; rest = p[1] if len(p) > 1 else ''
    rest = re.sub(r'\w+:\[[^\]]*\]', '', rest)
    ops = [x.strip() for x in rest.split(',')]
    last = ops[-1].split() if ops and ops[-1] else []
    mods = ' '.join(last[1:]) if last else ''
    if last: ops[-1] = last[0]
    d = dict(op=op, ops=ops, mods=mods, line=line, w=set(), r=set(), kind='other', dpp=False)
    R = [regs(x) for x in ops]
    allr = lambda l: set().union(*l) if l else set()
    if op.startswith('v_mfma'):
        d['kind'] = 'mfma'; d['w'] = R[0]; d['r'] = allr(R[1:]); d['C'] = R[3]; d['AB'] = R[1] | R[2]
    elif op.startswith('v_'):
        d['kind'] = 'valu'
        d['dpp'] = 'dpp' in op or 'row_' in line or 'quad_perm' in line
        if op.startswith('v_permlane'): d['w'] = R[0] | R[1]; d['r'] = R[0] | R[1]
        elif op.startswith(('v_add_co', 'v_addc_co')): d['w'] = R[0] | R[1]; d['r'] = allr(R[2:])
        else:
            d['w'] = R[0]; d['r'] = allr(R[1:])
            if op.startswith(('v_fmac', 'v_writelane')) or d['dpp']: d['r'] |= R[0]
    elif op.startswith(('global_load', 'buffer_load')): d['kind'] = 'vmem'; d['w'] = R[0]; d['r'] = allr(R[1:])
    elif op.startswith('global_store'): d['kind'] = 'vmem'; d['r'] = allr(R); d['data'] = R[1] if 'x4' in op or 'x3' in op else set()
    elif op.startswith('buffer_store'): d['kind'] = 'vmem'; d['r'] = allr(R); d['data'] = R[0] if 'x4' in op or 'x3' in op else set()
    elif op.startswith('ds_read'): d['kind'] = 'ds'; d['w'] = R[0]; d['r'] = allr(R[1:])
    elif op.startswith('ds_'): d['kind'] = 'ds'; d['r'] = allr(R)
    elif op.startswith('s_'):
        d['kind'] = 'salu'
        if not op.startswith(('s_cmp', 's_waitcnt', 's_nop', 's_cbranch', 's_branch', 's_barrier', 's_endpgm', 's_sleep', 's_setprio', 's_bitcmp')):
            d['w'] = R[0]; d['r'] = allr(R[1:])
    d['ws'] = int(ops[0]) + 1 if op == 's_nop' else 1
    return d
def need(a, b):
    n = 0; v = lambda s: {x for x in s if x[0] == 'v'}; s_ = lambda s: {x for x in s if x[0] == 's'}
    if a['kind'] == 'valu':
        wv = v(a['w']); wsg = s_(a['w'])
        if b['kind'] == 'valu':
            if b['dpp'] and wv & b['r']: n = max(n, 2)
            if b['op'].startswith('v_permlane') and wv & b['r']: n = max(n, 2)
            if b['op'].startswith(('v_readlane', 'v_readfirstlane')) and wv & b['r']: n = max(n, 1)
            if wsg & b['r']: n = max(n, 2)
            if a['op'].startswith(TRANS) and not b['op'].startswith(TRANS) and wv & b['r']: n = max(n, 1)
        if b['kind'] == 'mfma' and wv & b['r']: n = max(n, 2)
        if b['kind'] == 'vmem' and wsg & b['r']: n = max(n, 5)
    if a['kind'] == 'mfma':
        if b['kind'] == 'mfma':
            if a['w'] & b['AB']: n = max(n, 8)
            if a['w'] & b['C'] and a['w'] != b['C']: n = max(n, 6)
        elif b['kind'] in ('valu', 'vmem', 'ds'):
            if a['w'] & (b['r'] | b['w']): n = max(n, 8)
            if b['kind'] == 'valu' and a['C'] & b['w']: n = max(n, 3)
    if a['kind'] == 'vmem' and a.get('data') and a['data'] & b['w']: n = max(n, 2)
    return n
def fix(text, verbose=False):
    out = []; hist = []
    for line in text.split('\n'):
        d = parse(line)
        if d is None: out.append(line); continue
        dist = 0; pad = 0
        for a in reversed(hist[-12:]):
            pad = max(pad, need(a, d) - dist); dist += a['ws']
            if dist >= 10: break
        if pad > 0:
            if verbose: print('pad', pad, 'before', line)
            out.append(f's_nop {pad-1}'); hist.append(parse(f's_nop {pad-1}'))
        out.append(line); hist.append(d)
        if d['op'] in ('s_branch', 's_endpgm'): hist = []
    return '\n'.join(out)
```

```python
import sys, struct
import hz
KN = "parallel_sum__sliding_block_cached__glu_gated_glu__decode_kernel"
def f2u(x): return "0x%08x" % struct.unpack("<I", struct.pack("<f", x))[0]
LOG2E = f2u(1.4426950408889634)
DPP = "row_mask:0xf bank_mask:0xf"
X1Q, X1G, X2, X3 = 0x10000, 0x50000, 0x90000, 0xD0000
L_FLAG, L_ML, L_Q, L_H, L_OW, L_OUT = 0, 64, 128, 384, 640, 640 + 4096
LDS_USED = L_OUT + 4 * 320
SPIN = 1 << 18

class G:
    def __init__(s, **o):
        s.o = dict(nt="nt", stamps=False, lds=LDS_USED, ackwait=True, hold=0); s.o.update(o)
        s.L = []; s.ns = 0
    def e(s, t): s.L.append(t)
    def stamp(s, i):
        if s.o["stamps"]: s.e(f"s_memrealtime s[{60+2*i}:{61+2*i}]")
    def end(s):
        s.e("s_branch L_stamp" if s.o["stamps"] else "s_endpgm")
    def masks(s):
        e = s.e
        e("v_and_b32 v12, 1, v3\nv_lshlrev_b32 v12, 4, v12\nv_mov_b32 v13, 0xffff\nv_lshlrev_b32 v12, v12, v13")
        e("v_bfe_u32 v13, v3, 1, 2")
        for t in range(4):
            e(f"v_cmp_eq_u32 s[{40+2*t}:{41+2*t}], {t}, v13")
        for t in range(4):
            e(f"v_cndmask_b32 v{8+t}, 0, v12, s[{40+2*t}:{41+2*t}]")
    def xrows(s, op, v, t):
        e = s.e
        e(f"v_mov_b32 v{t}, v{v}\nv_permlane16_swap_b32 v{v}, v{t}\n{op} v{v}, v{v}, v{t}")
        e(f"v_mov_b32 v{t}, v{v}\nv_permlane32_swap_b32 v{v}, v{t}\n{op} v{v}, v{v}, v{t}")
    def wsum(s, v, t):
        e = s.e
        e(f"v_add_f32_dpp v{v}, v{v}, v{v} quad_perm:[1,0,3,2] {DPP}")
        e(f"v_add_f32_dpp v{v}, v{v}, v{v} quad_perm:[2,3,0,1] {DPP}")
        e(f"v_add_f32_dpp v{v}, v{v}, v{v} row_ror:4 {DPP}")
        e(f"v_add_f32_dpp v{v}, v{v}, v{v} row_ror:8 {DPP}")
        s.xrows("v_add_f32", v, t)
    def tag(s):
        e = s.e
        e("s_waitcnt lgkmcnt(0)\ns_mul_i32 s33, s33, 1664525\ns_add_u32 s33, s33, 1013904223")
    def rbf(s, v):
        s.e(f"v_cvt_pk_bf16_f32 v{v}, v{v}, v{v}\nv_and_b32 v{v}, 0xffff0000, v{v}")

    def build(s):
        e = s.e; o = s.o; nt = o["nt"]
        e(f"; @launch grid=(256,1,1) block=(896,1,1) lds={o['lds']}")
        e('.amdgcn_target "amdgcn-amd-amdhsa--gfx950"\n.text')
        e(f".globl {KN}\n.p2align 8\n.type {KN},@function\n{KN}:")
        s.stamp(0)
        if o.get("pad"): e("s_memrealtime s[90:91]")
        e("s_load_dwordx16 s[8:23], s[0:1], 0\ns_load_dwordx8 s[24:31], s[0:1], 64")
        e("v_lshrrev_b32 v1, 6, v0\ns_cmp_ge_u32 s2, 0x100\nv_readfirstlane_b32 s3, v1\ns_cbranch_scc1 L_exit")
        e("v_and_b32 v1, 63, v0\nv_bfe_u32 v2, v0, 4, 2\nv_and_b32 v3, 15, v0")
        e("s_and_b32 s4, s2, 31\ns_lshr_b32 s5, s2, 5")
        if o["stamps"]:
            for i in range(1, 14): e(f"s_mov_b32 s{60+2*i}, 0")
        e("s_cmp_ge_u32 s3, 2\ns_cbranch_scc1 L_notA")
        e("s_mul_i32 s6, s5, 80\nv_mad_u32_u24 v4, v2, 20, s6")
        e("v_lshlrev_b32 v5, 4, v1\nv_lshlrev_b32 v6, 2, v1\nv_add_lshl_u32 v7, v4, v3, 1\nv_and_b32 v12, 3, v3\nv_add_lshl_u32 v12, v4, v12, 1")
        e("s_cmp_eq_u32 s3, 0\ns_cbranch_scc0 L_A1")
        e("s_lshl_b32 s6, s4, 8\nv_lshlrev_b32 v14, 13, v4\nv_lshl_add_u32 v14, v3, 4, v14\nv_add_u32 v14, s6, v14\nv_mov_b32 v15, 0")
        e("s_movk_i32 s34, 0x2000\ns_mov_b32 s35, 0\ns_waitcnt lgkmcnt(0)\nv_lshl_add_u64 v[14:15], s[14:15], 0, v[14:15]")
        e("L_Aissue:")
        s.stamp(1)
        e("global_load_dwordx4 v[16:19], v5, s[8:9]\nglobal_load_dword v20, v6, s[8:9] offset:1024")
        e("global_load_ushort v21, v7, s[8:9]\nglobal_load_ushort v22, v12, s[8:9] offset:32")
        for u in range(20):
            e(f"global_load_dwordx4 v[{48+4*u}:{51+4*u}], v[14:15], off {nt}")
            if u < 19: e("v_lshl_add_u64 v[14:15], s[34:35], 0, v[14:15]")
        e("s_load_dword s33, s[30:31], 0")
        e("s_cmp_eq_u32 s3, 0\ns_cbranch_scc0 L_Abody\ns_barrier\ns_branch L_Abody")
        e("L_A1:")
        e("s_cmp_ge_u32 s4, 27\ns_cbranch_scc1 L_RED")
        e("s_lshl_b32 s6, s4, 7\nv_mul_u32_u24 v14, 0xd80, v4\nv_and_b32 v13, 7, v3\nv_lshl_add_u32 v14, v13, 4, v14\nv_add_u32 v14, s6, v14\nv_mov_b32 v15, 0")
        e("v_cmp_gt_u32 vcc, 8, v3\ns_movk_i32 s34, 0xd80\ns_mov_b32 s35, 0\ns_waitcnt lgkmcnt(0)")
        e("v_lshl_add_u64 v[16:17], s[20:21], 0, v[14:15]\nv_lshl_add_u64 v[14:15], s[22:23], 0, v[14:15]")
        e("v_cndmask_b32 v14, v14, v16, vcc\nv_cndmask_b32 v15, v15, v17, vcc")
        e("s_barrier\ns_branch L_Aissue")
        e("L_notA:")
        e("s_cmp_ge_u32 s3, 10\ns_cbranch_scc1 L_O")
        e("s_sub_u32 s7, s3, 2\ns_lshl_b32 s6, s4, 21\ns_lshl_b32 s36, s5, 16\ns_add_u32 s6, s6, s36\ns_lshl_b32 s36, s7, 13\ns_add_u32 s6, s6, s36")
        e(f"s_add_u32 s6, s6, {6144*256+4096}")
        e("v_bfe_u32 v4, v0, 2, 2\nv_lshlrev_b32 v4, 8, v4\nv_lshl_add_u32 v4, v2, 6, v4\nv_and_b32 v6, 3, v0\nv_lshl_add_u32 v4, v6, 4, v4\nv_add_u32 v4, s6, v4")
        e("v_lshlrev_b32 v5, 10, v2\nv_lshl_add_u32 v5, v3, 4, v5\nv_add_u32 v5, s6, v5")
        e("s_waitcnt lgkmcnt(0)\ns_barrier")
        if o["hold"] == 1: e("s_barrier")
        s.stamp(1)
        for t in range(8): e(f"global_load_dwordx4 v[{48+4*t}:{51+4*t}], v4, s[10:11] offset:{(t-4)*1024} {nt}")
        for t in range(8): e(f"global_load_dwordx4 v[{80+4*t}:{83+4*t}], v5, s[12:13] offset:{(t//4-1)*4096+(t%4)*256} {nt}")
        e("s_branch L_KVbody")
        e("L_O:")
        e("s_sub_u32 s7, s3, 10\ns_lshl_b32 s6, s4, 2\ns_add_u32 s6, s6, s7\ns_mul_i32 s36, s5, 160")
        e(f"s_mul_i32 s37, s6, {32*1280}\ns_add_u32 s37, s37, s36\ns_mul_i32 s38, s6, {16*1280}\ns_add_u32 s38, s38, s36")
        e(f"v_mul_u32_u24 v6, {4*1280}, v2\nv_lshlrev_b32 v7, 4, v3\nv_lshl_add_u32 v4, v6, 1, v7\nv_add_u32 v4, s37, v4\nv_add_u32 v5, {4*1280}, v4\nv_add3_u32 v6, v6, v7, s38")
        e("v_mov_b32 v12, 0\nv_lshlrev_b32 v13, 2, v1\nv_cmp_gt_u32 vcc, 10, v3\nv_and_b32 v13, 0x7c, v13\nds_write_b32 v13, v12")
        e("s_waitcnt lgkmcnt(0)\ns_load_dword s33, s[30:31], 0\ns_barrier")
        if o["hold"] == 1: e("s_barrier")
        s.stamp(1)
        e("s_mov_b64 exec, vcc\ns_cmp_ge_u32 s4, 27\ns_cbranch_scc1 L_Onowd")
        for u in range(4): e(f"global_load_dwordx4 v[{80+4*u}:{83+4*u}], v6, s[24:25] offset:{u*1280} {nt}")
        e("L_Onowd:")
        for u in range(8): e(f"global_load_dwordx4 v[{48+4*u}:{51+4*u}], v{4+u//4}, s[16:17] offset:{(u%4)*1280} {nt}")
        e("s_mov_b64 exec, -1\ns_branch L_Obody")

        e("L_Abody:")
        s.stamp(2)
        s.masks()
        e("s_waitcnt vmcnt(22)")
        for i in range(5):
            e(f"v_lshlrev_b32 v{24+2*i}, 16, v{16+i}\nv_and_b32 v{25+2*i}, 0xffff0000, v{16+i}")
        e("v_add_f32 v34, v24, v25")
        for i in range(2, 10): e(f"v_add_f32 v34, v34, v{24+i}")
        s.wsum(34, 35)
        e(f"v_mul_f32 v34, {f2u(1/640)}, v34")
        for i in range(10): e(f"v_sub_f32 v{24+i}, v{24+i}, v34")
        e("v_mul_f32 v36, v24, v24")
        for i in range(1, 10): e(f"v_fmac_f32 v36, v{24+i}, v{24+i}")
        s.wsum(36, 35)
        e(f"v_mul_f32 v36, {f2u(1/640)}, v36")
        s.rbf(34); s.rbf(36)
        e(f"v_add_f32 v36, {f2u(1e-5)}, v36"); s.rbf(36)
        e("v_sqrt_f32 v36, v36"); s.rbf(36)
        e("v_rcp_f32 v36, v36\ns_waitcnt vmcnt(20)")
        e("v_lshlrev_b32 v21, 16, v21\nv_lshlrev_b32 v22, 16, v22\nv_sub_f32 v21, v21, v34\nv_sub_f32 v22, v22, v34")
        s.rbf(21); s.rbf(22)
        e("v_mul_f32 v21, v21, v36\nv_mul_f32 v22, v22, v36\nv_cvt_pk_bf16_f32 v21, v21, v21\nv_cvt_pk_bf16_f32 v22, v22, v22")
        s.tag()
        e(f"s_mul_i32 s6, s3, {X1G-X1Q}\ns_lshl_b32 s7, s4, 13\ns_add_u32 s6, s6, s7\ns_add_u32 s6, s6, {X1Q}\ns_lshl_b32 s7, s5, 10\ns_add_u32 s7, s7, s6\ns_add_u32 s6, s6, 0x1000")
        e("v_add_u32 v6, s7, v5\nv_add_u32 v7, s6, v5\nv_mov_b32 v47, s33\ns_mov_b32 s48, 0\ns_mov_b32 s49, -1")
        for u in range(20):
            a = 24 + 4 * (u % 2)
            for t in range(4): e(f"v_and_b32_dpp v{a+t}, v{21+u//16}, v{8+t} row_newbcast:{u%16} {DPP}")
            e(f"s_waitcnt vmcnt({19-u})")
            e(f"v_mfma_f32_16x16x32_bf16 v[40:43], v[{a}:{a+3}], v[{48+4*u}:{51+4*u}], {'0' if u == 0 else 'v[40:43]'}")
        s.stamp(3)
        e("v_cndmask_b32 v44, v40, v42, s[48:49]\nv_cndmask_b32 v45, v41, v43, s[48:49]")
        e("global_store_dwordx4 v6, v[44:47], s[30:31] sc1")
        if o["hold"] == 1: e("s_barrier")
        e("v_and_b32 v12, 1, v2\nv_lshlrev_b32 v12, 2, v12\nv_lshl_add_u32 v12, v3, 3, v12\nv_and_b32 v13, 2, v2\nv_add_u32 v12, v12, v13")
        if o["ackwait"]: e("s_waitcnt vmcnt(0)")
        s.stamp(4)
        e(f"s_mov_b32 s39, {SPIN}")
        e("L_poll1:")
        for p in range(8): e(f"global_load_dwordx4 v[{48+4*p}:{51+4*p}], v7, s[30:31] offset:{(p-4)*1024} sc1")
        e("s_sub_u32 s39, s39, 1\ns_cbranch_scc1 L_got1")
        e("s_waitcnt vmcnt(0)")
        e("v_min3_u32 v13, v51, v55, v59\nv_max3_u32 v14, v51, v55, v59\nv_min3_u32 v13, v13, v63, v67\nv_max3_u32 v14, v14, v63, v67")
        e("v_min3_u32 v13, v13, v71, v75\nv_max3_u32 v14, v14, v71, v75\nv_min3_u32 v13, v13, v79, v47\nv_max3_u32 v14, v14, v79, v47")
        e("v_cmp_ne_u32 vcc, v13, v14\ns_cbranch_vccnz L_poll1")
        e("L_got1:\ns_waitcnt vmcnt(0)")
        s.stamp(5)
        for p in range(1, 8): e(f"v_add_f32 v48, v48, v{48+4*p}\nv_add_f32 v49, v49, v{49+4*p}")
        e("v_cvt_pk_bf16_f32 v48, v48, v49")
        e("s_cmp_eq_u32 s3, 0\ns_cbranch_scc1 L_A0")
        e("v_lshlrev_b32 v50, 16, v48\nv_and_b32 v51, 0xffff0000, v48")
        e(f"v_mul_f32 v52, {f2u(-1.4426950408889634)}, v50\nv_mul_f32 v53, {f2u(-1.4426950408889634)}, v51\nv_exp_f32 v52, v52\nv_exp_f32 v53, v53")
        e("v_add_f32 v52, 1.0, v52\nv_add_f32 v53, 1.0, v53\nv_rcp_f32 v52, v52\nv_rcp_f32 v53, v53")
        s.rbf(52); s.rbf(53)
        e(f"v_mul_f32_dpp v52, v50, v52 row_ror:8 {DPP}\nv_mul_f32_dpp v53, v51, v53 row_ror:8 {DPP}")
        e("v_cvt_pk_bf16_f32 v52, v52, v52\nv_cvt_pk_bf16_f32 v53, v53, v53\nv_lshlrev_b32 v12, 2, v12\nv_cmp_gt_u32 vcc, 8, v3\ns_mov_b64 exec, vcc")
        e(f"ds_write_b64 v12, v[52:53] offset:{L_H}\ns_waitcnt lgkmcnt(0)\ns_mov_b64 exec, -1")
        s.stamp(6)
        s.end()
        e("L_A0:")
        e(f"v_lshlrev_b32 v12, 1, v12\nv_mov_b32 v13, 0\nv_mov_b32 v14, 1\nds_write_b32 v12, v48 offset:{L_Q}\nds_write_b32 v13, v14 offset:{L_FLAG}")
        e(f"s_lshl_b32 s6, s4, 13\ns_lshl_b32 s7, s5, 10\ns_add_u32 s6, s6, s7\ns_add_u32 s6, s6, {X2}\nv_add_u32 v6, s6, v5\nv_lshlrev_b32 v7, 3, v1")
        e(f"s_mov_b32 s39, {SPIN}")
        e("L_spinml:")
        for k in range(4): e(f"ds_read_b128 v[{16+4*k}:{19+4*k}], v13 offset:{L_ML+16*k}")
        e("s_sub_u32 s39, s39, 1\ns_cbranch_scc1 L_gotml")
        e("s_waitcnt lgkmcnt(0)")
        e("v_min3_u32 v14, v17, v19, v21\nv_min3_u32 v14, v14, v23, v25\nv_min3_u32 v14, v14, v27, v29\nv_min_u32 v14, v14, v31")
        e("v_cmp_eq_u32 vcc, 0, v14\ns_cbranch_vccz L_gotml\ns_sleep 1\ns_branch L_spinml")
        e("L_gotml:\ns_waitcnt lgkmcnt(0)")
        s.stamp(6)
        e("v_max3_f32 v14, v16, v18, v20\nv_max3_f32 v14, v14, v22, v24\nv_max3_f32 v14, v14, v26, v28\nv_max_f32 v14, v14, v30")
        for k in range(8): e(f"v_sub_f32 v{16+2*k}, v{16+2*k}, v14")
        for k in range(8): e(f"v_mul_f32 v{16+2*k}, {LOG2E}, v{16+2*k}")
        for k in range(8): e(f"v_exp_f32 v{16+2*k}, v{16+2*k}")
        e("v_mul_f32 v15, v16, v17")
        for k in range(1, 8): e(f"v_fmac_f32 v15, v{16+2*k}, v{17+2*k}")
        e(f"v_log_f32 v46, v15\nv_rcp_f32 v15, v15\nv_fmac_f32 v46, {LOG2E}, v14")
        for k in range(8): e(f"v_mul_f32 v{16+2*k}, v{16+2*k}, v15")
        s.stamp(7)
        e("s_barrier")
        for k in range(8): e(f"ds_read_b64 v[{48+2*k}:{49+2*k}], v7 offset:{L_OW+512*k}")
        for k in range(8):
            e(f"s_waitcnt lgkmcnt({7-k})" if not o["stamps"] else "s_waitcnt lgkmcnt(0)")
            op = "v_mul_f32" if k == 0 else "v_fmac_f32"
            e(f"{op} v44, v{16+2*k}, v{48+2*k}\n{op} v45, v{16+2*k}, v{49+2*k}")
        e("global_store_dwordx4 v6, v[44:47], s[30:31] sc1")
        s.stamp(8)
        s.end()

        e("L_KVbody:")
        s.stamp(2)
        s.masks()
        e("v_lshlrev_b32 v7, 6, v2\nv_lshl_add_u32 v7, v6, 4, v7\nv_mov_b32 v13, 0")
        for t in range(4):
            e(f"s_mov_b32 s{40+2*t}, {0x000f000f << (4*t)}\ns_mov_b32 s{41+2*t}, s{40+2*t}")
        for c in range(1, 4):
            e(f"s_mov_b32 s{46+2*c}, {0x11111111 << c}\ns_mov_b32 s{47+2*c}, s{46+2*c}")
        e(f"s_lshl_b32 s6, s7, 9\nv_lshlrev_b32 v4, 5, v3\nv_lshl_add_u32 v4, v2, 4, v4\nv_add_u32 v4, s6, v4\ns_lshl_b32 s6, s7, 3\nv_mov_b32 v5, s6")
        e(f"s_mov_b32 s39, {SPIN}")
        e("L_spinq:")
        e(f"ds_read_b32 v14, v13 offset:{L_FLAG}\nds_read_b128 v[32:35], v7 offset:{L_Q}")
        e("s_sub_u32 s39, s39, 1\ns_cbranch_scc1 L_gotq")
        e("s_waitcnt lgkmcnt(0)\nv_cmp_eq_u32 vcc, 0, v14\ns_cbranch_vccz L_gotq\ns_sleep 2\ns_branch L_spinq")
        e("L_gotq:\ns_waitcnt lgkmcnt(0)")
        s.stamp(3)
        for t in range(4):
            for k in range(4): e(f"v_cndmask_b32 v{16+4*t+k}, 0, v{32+k}, s[{40+2*t}:{41+2*t}]")
        e("s_waitcnt vmcnt(8)")
        for t in range(4):
            for Gp in range(2):
                d = 36 + 4 * Gp; b = 48 + 4 * (4 * Gp + t)
                e(f"v_mfma_f32_16x16x32_bf16 v[{d}:{d+3}], v[{16+4*t}:{19+4*t}], v[{b}:{b+3}], {'0' if t == 0 else f'v[{d}:{d+3}]'}")
        for c in range(1, 4):
            e(f"v_cndmask_b32 v36, v36, v{36+c}, s[{46+2*c}:{47+2*c}]\nv_cndmask_b32 v40, v40, v{40+c}, s[{46+2*c}:{47+2*c}]")
        for qp in ("[1,0,3,2]", "[2,3,0,1]"):
            e(f"v_add_f32_dpp v36, v36, v36 quad_perm:{qp} {DPP}\nv_add_f32_dpp v40, v40, v40 quad_perm:{qp} {DPP}")
        e("v_cvt_pk_bf16_f32 v37, v36, v40\nv_lshlrev_b32 v36, 16, v37\nv_and_b32 v40, 0xffff0000, v37")
        e(f"v_mul_f32 v36, {f2u(128**-0.5)}, v36\nv_mul_f32 v40, {f2u(128**-0.5)}, v40")
        e("v_cvt_pk_bf16_f32 v37, v36, v40\nv_lshlrev_b32 v36, 16, v37\nv_and_b32 v40, 0xffff0000, v37")
        e(f"v_max_f32 v44, v36, v40\nv_max_f32_dpp v44, v44, v44 row_ror:4 {DPP}\nv_max_f32_dpp v44, v44, v44 row_ror:8 {DPP}")
        s.xrows("v_max_f32", 44, 37)
        e(f"v_sub_f32 v36, v36, v44\nv_sub_f32 v40, v40, v44\nv_mul_f32 v36, {LOG2E}, v36\nv_mul_f32 v40, {LOG2E}, v40\nv_exp_f32 v36, v36\nv_exp_f32 v40, v40")
        e(f"v_add_f32 v45, v36, v40\nv_cvt_pk_bf16_f32 v38, v36, v36\nv_cvt_pk_bf16_f32 v39, v40, v40")
        e(f"v_add_f32_dpp v45, v45, v45 row_ror:4 {DPP}\nv_add_f32_dpp v45, v45, v45 row_ror:8 {DPP}")
        s.xrows("v_add_f32", 45, 37)
        e(f"ds_write_b64 v5, v[44:45] offset:{L_ML}")
        for t in range(8):
            for k in range(4): e(f"v_and_b32_dpp v{48+4*t+k}, v{38+t//4}, v{8+k} row_newbcast:{4*(t%4)} {DPP}")
        s.stamp(4)
        for t in range(8):
            e(f"s_waitcnt vmcnt({7-t})")
            e(f"v_mfma_f32_16x16x32_bf16 v[40:43], v[{48+4*t}:{51+4*t}], v[{80+4*t}:{83+4*t}], {'0' if t == 0 else 'v[40:43]'}")
        s.stamp(5)
        e("s_mov_b32 exec_hi, 0")
        e(f"ds_write_b128 v4, v[40:43] offset:{L_OW}\ns_waitcnt lgkmcnt(0)\ns_barrier")
        if o["stamps"]: e("s_mov_b64 exec, -1")
        s.stamp(6)
        s.end()

        e("L_Obody:")
        s.stamp(2)
        s.masks()
        s.tag()
        e(f"s_lshl_b32 s6, s4, 13\ns_lshl_b32 s36, s7, 8\ns_add_u32 s6, s6, s36\ns_add_u32 s6, s6, {X2+4096}")
        e("v_lshrrev_b32 v4, 2, v3\nv_lshlrev_b32 v4, 10, v4\nv_lshl_add_u32 v4, v2, 6, v4\nv_and_b32 v5, 3, v3\nv_lshl_add_u32 v4, v5, 4, v4\nv_add_u32 v4, s6, v4")
        e("s_lshl_b32 s6, s7, 6\nv_lshlrev_b32 v5, 4, v2\nv_add_u32 v5, s6, v5")
        e("s_mul_i32 s6, s7, 320\nv_lshlrev_b32 v6, 5, v3\nv_lshl_add_u32 v6, v2, 4, v6\nv_add_u32 v6, s6, v6")
        e(f"s_mul_i32 s6, s5, 20480\ns_lshl_b32 s36, s4, 7\ns_add_u32 s6, s6, s36\ns_add_u32 s6, s6, {X3}")
        e("v_lshrrev_b32 v7, 3, v1\nv_lshlrev_b32 v7, 12, v7\nv_and_b32 v12, 7, v1\nv_lshl_add_u32 v7, v12, 4, v7\nv_add_u32 v7, s6, v7\nv_lshlrev_b32 v14, 3, v1")
        e("v_mov_b32 v47, s33\nv_mov_b32 v40, 0\nv_mov_b32 v41, 0\nv_mov_b32 v42, 0\nv_mov_b32 v43, 0")
        e("s_mov_b32 s48, 0x03ff03ff\ns_mov_b32 s49, 0")
        e("s_barrier")
        s.stamp(3)
        e("s_cmp_ge_u32 s4, 27\ns_cbranch_scc1 L_Onowd2")
        e(f"ds_read_b128 v[32:35], v5 offset:{L_H}\ns_waitcnt lgkmcnt(0)")
        for u in range(4):
            for k in range(4): e(f"v_and_b32 v{16+4*u+k}, v{32+u}, v{8+k}")
        e("s_waitcnt vmcnt(8)")
        for u in range(4): e(f"v_mfma_f32_16x16x32_bf16 v[40:43], v[{16+4*u}:{19+4*u}], v[{80+4*u}:{83+4*u}], v[40:43]")
        e("L_Onowd2:")
        e(f"s_mov_b32 s39, {SPIN}\ns_waitcnt vmcnt(0)")
        s.stamp(4)
        e("L_poll2:")
        e("global_load_dwordx4 v[96:99], v4, s[30:31] offset:-4096 sc1\nglobal_load_dwordx4 v[100:103], v4, s[30:31] sc1")
        e("s_sub_u32 s39, s39, 1\ns_cbranch_scc1 L_got2\ns_waitcnt vmcnt(0)")
        e("v_min3_u32 v12, v99, v103, v47\nv_max3_u32 v13, v99, v103, v47\nv_cmp_ne_u32 vcc, v12, v13\ns_cbranch_vccnz L_poll2")
        e("L_got2:\ns_waitcnt vmcnt(0)")
        s.stamp(5)
        e(f"v_max_f32 v12, v98, v102\nv_max_f32_dpp v12, v12, v12 row_ror:4 {DPP}\nv_max_f32_dpp v12, v12, v12 row_ror:8 {DPP}")
        e("v_sub_f32 v98, v98, v12\nv_sub_f32 v102, v102, v12\nv_exp_f32 v98, v98\nv_exp_f32 v102, v102")
        e("v_mul_f32 v96, v96, v98\nv_add_f32 v12, v98, v102\nv_mul_f32 v97, v97, v98\nv_fmac_f32 v96, v100, v102\nv_fmac_f32 v97, v101, v102")
        for rr in (4, 8):
            for v in (12, 96, 97): e(f"v_add_f32_dpp v{v}, v{v}, v{v} row_ror:{rr} {DPP}")
        e("v_rcp_f32 v12, v12\nv_mul_f32 v96, v96, v12\nv_mul_f32 v97, v97, v12\nv_cvt_pk_bf16_f32 v96, v96, v96\nv_cvt_pk_bf16_f32 v97, v97, v97")
        for u in range(8):
            a = 16 + 4 * (u % 4)
            for k in range(4): e(f"v_and_b32_dpp v{a+k}, v{96+u%2}, v{8+k} row_newbcast:{u//2} {DPP}")
            if u >= 1:
                p = u - 1; ap = 16 + 4 * (p % 4)
                e(f"v_mfma_f32_16x16x32_bf16 v[40:43], v[{ap}:{ap+3}], v[{48+4*p}:{51+4*p}], v[40:43]")
        e("v_mfma_f32_16x16x32_bf16 v[40:43], v[28:31], v[76:79], v[40:43]")
        e("s_mov_b64 exec, s[48:49]")
        e(f"ds_write_b128 v6, v[40:43] offset:{L_OUT}\ns_waitcnt lgkmcnt(0)\ns_barrier")
        s.stamp(6)
        e("s_cmp_eq_u32 s7, 0\ns_cbranch_scc0 L_Oend")
        e("s_mov_b32 exec_lo, -1\ns_movk_i32 exec_hi, 0xff")
        for k in range(4): e(f"ds_read_b64 v[{16+2*k}:{17+2*k}], v14 offset:{L_OUT+320*k}")
        e("s_waitcnt lgkmcnt(0)")
        e("v_add_f32 v16, v16, v18\nv_add_f32 v17, v17, v19\nv_add_f32 v20, v20, v22\nv_add_f32 v21, v21, v23\nv_add_f32 v44, v16, v20\nv_add_f32 v45, v17, v21")
        e("global_store_dwordx4 v7, v[44:47], s[30:31] sc1")
        s.stamp(7)
        e("L_Oend:")
        if o["stamps"]: e("s_mov_b64 exec, -1")
        s.end()

        e("L_RED:")
        e(f"s_sub_u32 s7, s4, 27\ns_mul_i32 s6, s5, 20480\ns_lshl_b32 s36, s7, 12\ns_add_u32 s6, s6, s36\ns_add_u32 s6, s6, {X3}\nv_add_u32 v4, s6, v5")
        e("s_mul_i32 s6, s5, 160\ns_lshl_b32 s36, s7, 5\ns_add_u32 s6, s6, s36\nv_and_b32 v6, 7, v1\nv_lshl_add_u32 v6, v6, 2, s6")
        e("s_waitcnt lgkmcnt(0)\ns_load_dword s33, s[30:31], 0\ns_barrier")
        if o["hold"] == 1: e("s_barrier")
        e("global_load_dword v20, v6, s[8:9]")
        s.tag()
        e(f"v_mov_b32 v47, s33\ns_mov_b32 s39, {SPIN}\ns_waitcnt vmcnt(0)\nv_lshlrev_b32 v21, 16, v20\nv_and_b32 v20, 0xffff0000, v20")
        e("s_barrier\ns_barrier")
        s.stamp(8)
        e("L_poll3:")
        for k in range(4): e(f"global_load_dwordx4 v[{48+4*k}:{51+4*k}], v4, s[30:31] offset:{1024*k} sc1")
        e("s_sub_u32 s39, s39, 1\ns_cbranch_scc1 L_got3\ns_waitcnt vmcnt(0)")
        e("v_min3_u32 v12, v51, v55, v47\nv_max3_u32 v13, v51, v55, v47\nv_min3_u32 v12, v12, v59, v63\nv_max3_u32 v13, v13, v59, v63")
        e("v_cmp_ne_u32 vcc, v12, v13\ns_cbranch_vccnz L_poll3")
        e("L_got3:\ns_waitcnt vmcnt(0)")
        s.stamp(9)
        e("v_add_f32 v48, v48, v52\nv_add_f32 v49, v49, v53\nv_add_f32 v56, v56, v60\nv_add_f32 v57, v57, v61\nv_add_f32 v48, v48, v56\nv_add_f32 v49, v49, v57")
        e(f"v_add_f32_dpp v48, v48, v48 row_ror:8 {DPP}\nv_add_f32_dpp v49, v49, v49 row_ror:8 {DPP}")
        e("v_mov_b32 v50, v48\nv_mov_b32 v51, v49\nv_permlane16_swap_b32 v48, v50\nv_permlane16_swap_b32 v49, v51\nv_add_f32 v48, v48, v50\nv_add_f32 v49, v49, v51")
        e("v_mov_b32 v50, v48\nv_mov_b32 v51, v49\nv_permlane32_swap_b32 v48, v50\nv_permlane32_swap_b32 v49, v51\nv_add_f32 v48, v48, v50\nv_add_f32 v49, v49, v51")
        e("v_add_f32 v48, v48, v21\nv_add_f32 v49, v49, v20\nv_cvt_pk_bf16_f32 v48, v48, v49")
        e("s_mov_b64 exec, 0xff\nglobal_store_dword v6, v48, s[26:27]")
        e("s_cmp_eq_u32 s2, 27\ns_cbranch_scc0 L_Rend")
        e("s_mov_b64 exec, 1\nv_mov_b32 v12, 0\nglobal_store_dword v12, v47, s[30:31] sc1")
        e("L_Rend:")
        if o.get("pad"):
            e(f"L_pad:\ns_memrealtime s[92:93]\ns_waitcnt lgkmcnt(0)\ns_sub_u32 s92, s92, s90\ns_cmp_lt_u32 s92, {o['pad']}\ns_cbranch_scc1 L_pad")
        if o["stamps"]:
            e("s_mov_b64 exec, -1\ns_waitcnt vmcnt(0)")
            s.stamp(10)
            e("L_stamp:\ns_waitcnt lgkmcnt(0)")
            e("s_getreg_b32 s56, hwreg(HW_REG_HW_ID, 0, 16)\ns_getreg_b32 s57, hwreg(HW_REG_XCC_ID, 0, 4)\ns_lshl_b32 s57, s57, 16\ns_or_b32 s56, s56, s57")
            e("v_mov_b32 v9, 0\nv_writelane_b32 v9, s56, 0")
            for i in range(14): e(f"v_writelane_b32 v9, s{60+2*i}, {i+1}")
            e(f"s_mul_i32 s56, s2, 14\ns_add_u32 s56, s56, s3\ns_lshl_b32 s56, s56, 6\ns_add_u32 s56, s56, 0x4000000")
            e("v_lshlrev_b32 v10, 2, v1\nv_add_u32 v10, s56, v10\ns_mov_b64 exec, 0xffff\nglobal_store_dword v10, v9, s[30:31]")
        e("L_exit:\ns_endpgm")
        e(f""".section .rodata,"a"
.p2align 6
.amdhsa_kernel {KN}
  .amdhsa_next_free_vgpr 128
  .amdhsa_next_free_sgpr 96
  .amdhsa_accum_offset 128
  .amdhsa_group_segment_fixed_size 0
  .amdhsa_kernarg_size 96
  .amdhsa_user_sgpr_count 2
  .amdhsa_user_sgpr_kernarg_segment_ptr 1
  .amdhsa_system_sgpr_workgroup_id_x 1
  .amdhsa_float_denorm_mode_32 3
.end_amdhsa_kernel""")
        return hz.fix("\n".join(s.L)) + "\n"

if __name__ == "__main__":
    out = sys.argv[1]; o = {}
    for a in sys.argv[2:]:
        k, v = a.split("=")
        o[k] = int(v) if v.lstrip("-").isdigit() else v.replace("+", " ")
    open(out, "w").write(G(**o).build())
```

```python
import sys, struct
import hz
from gen import G, KN, f2u, LOG2E, DPP, X1Q, X1G, X2, X3, SPIN
L_XN, L_ML, L_Q, L_H, L_P1, L_OW, L_OUT = 0, 512, 576, 832, 1088, 1088 + 4096, 1088 + 8192
LDS_USED = L_OUT + 8 * 320
RW, RK, RV, RO, RD = 48, 68, 100, 132, 148
MF = "v_mfma_f32_16x16x32_bf16"

class G3(G):
    def __init__(s, **o):
        d = dict(nt="nt", stamps=False, lds=LDS_USED, ackwait=1, W=3, kq=16, kx=3, WO=3, vg=168, prio=0, nk0=0, prew=3, pollat=0,
                 warm=0, outf="", sprio=0, W0=0)
        d.update(o); super().__init__(**d); s.npad = 0
    def pad(s, inline):
        if not s.o["warm"]: return
        k = s.npad; s.npad += 1
        if inline: s.e(f"s_branch L_over{k}")
        s.e(f"L_pad{k}:\ns_branch L_warmed")
        if inline: s.e(f"L_over{k}:")
    def build(s):
        e = s.e; o = s.o; nt = o["nt"]; W = o["W"]; WO = o["WO"]; nk0 = o["nk0"]; st = o["stamps"]; W0 = o["W0"] or W
        e(f"; @launch grid=(256,1,1) block=(640,1,1) lds={o['lds']}")
        e('.amdgcn_target "amdgcn-amd-amdhsa--gfx950"\n.text')
        e(f".globl {KN}\n.p2align 8\n.type {KN},@function\n{KN}:")
        s.stamp(0)
        if o.get("pad"): e("s_memrealtime s[90:91]")
        e("s_load_dwordx16 s[8:23], s[0:1], 0\ns_load_dwordx8 s[24:31], s[0:1], 64")
        e("v_readfirstlane_b32 s3, v0\ns_lshr_b32 s5, s2, 5\ns_cmp_ge_u32 s5, 8\ns_cbranch_scc1 L_exit")
        e("s_lshr_b32 s3, s3, 6\nv_and_b32 v1, 63, v0\ns_and_b32 s4, s2, 31\ns_sub_u32 s7, s3, 2\ns_cbranch_scc0 L_S")
        e("s_mul_i32 s6, s5, 80\nv_lshlrev_b32 v5, 4, v1\nv_lshlrev_b32 v6, 2, v1\nv_add_lshl_u32 v7, v1, s6, 1\ns_waitcnt lgkmcnt(0)")
        e("global_load_dwordx4 v[16:19], v5, s[8:9]\nglobal_load_dword v20, v6, s[8:9] offset:1024")
        e("global_load_ushort v21, v7, s[8:9]\nglobal_load_ushort v22, v7, s[8:9] offset:32")
        e("s_branch L_H")
        e("L_S:")
        e("s_movk_i32 s34, 0x2000\ns_cmp_ge_u32 s7, 4\ns_cselect_b32 s36, 3, 4\ns_cmovk_i32 s34, 0xd80\ns_cselect_b32 s38, 27, 32")
        e("v_bfe_u32 v14, v0, s36, 4\nv_bfe_u32 v6, v0, 0, s36\ns_mul_i32 s35, s34, 5\nv_lshl_add_u32 v4, s5, 4, v14\ns_lshl_b32 s37, s4, s36")
        e("v_mul_u32_u24 v4, s35, v4\nv_add_u32 v6, s37, v6\nv_lshl_add_u32 v4, v6, 4, v4")
        e("s_cmp_ge_u32 s7, 6\ns_waitcnt lgkmcnt(0)\ns_cselect_b64 s[18:19], s[22:23], s[20:21]\ns_cmp_ge_u32 s7, 4\ns_cselect_b64 s[18:19], s[18:19], s[14:15]")
        e("s_cmp_ge_u32 s4, s38\ns_cbranch_scc1 L_now1")
        ko = [t * 1024 for t in range(8)]; vo = [(t // 4) * 4096 + (t % 4) * 256 for t in range(8)]
        KL = [(f"v_xor_b32 v5, {ko[t]^ko[t-1]}, v5\n" if t else "") + f"global_load_dwordx4 v[{RK+4*t}:{RK+3+4*t}], v5, s[10:11] {nt}" for t in range(8)]
        VL = [(f"v_xor_b32 v6, {vo[t]^vo[t-1]}, v6\n" if t else "") + f"global_load_dwordx4 v[{RV+4*t}:{RV+3+4*t}], v6, s[12:13] {nt}" for t in range(8)]
        WL = [("v_add_u32 v4, s34, v4\n" if u else "") + f"global_load_dwordx4 v[{RW+4*u}:{RW+3+4*u}], v4, s[18:19] {nt}" for u in range(5)]
        OL = [f"global_load_dwordx4 v[{RO+4*u}:{RO+3+4*u}], v7, s[16:17] offset:{u*1280} {nt}" for u in range(4)]
        DL = [f"global_load_dwordx4 v[{RD+4*u}:{RD+3+4*u}], v15, s[24:25] offset:{u*1280} {nt}" for u in range(2)]
        loads = KL[:nk0] + WL + KL[nk0:] + VL + OL + DL
        iW4 = nk0 + 4
        issued = [0]
        def win(k): return W0 if k <= iW4 else (W if k < 21 else WO)
        def issue_to(k, pace=True):
            while issued[0] <= k:
                i = issued[0]
                pre, _, ld = loads[i].rpartition("\n")
                if pre: e(pre)
                if pace and i >= win(i): e(f"s_waitcnt vmcnt({win(i)-1})")
                e(ld); issued[0] += 1
        def wait_for(k):
            assert k < issued[0]
            e(f"s_waitcnt vmcnt({issued[0]-1-k})")
        issue_to(W0 - 1)
        s.stamp(1)
        issue_to(iW4)
        e("L_now1:")
        if st:
            for i in range(2, 14): e(f"s_mov_b32 s{60+2*i}, 0")
        e("s_load_dword s33, s[30:31], 0\ns_mov_b32 s32, s4")
        e("s_xor_b32 s37, s7, s5\ns_xor_b32 s37, s37, s4\ns_and_b32 s37, s37, 7\ns_and_b32 s38, s37, 3\ns_lshl2_add_u32 s37, s37, s38")
        e("s_lshl2_add_u32 s36, s4, 3\ns_lshl3_add_u32 s36, s36, s5\ns_lshl3_add_u32 s36, s36, s7\ns_lshl_b32 s36, s36, 5\ns_or_b32 s36, s36, s37\ns_lshl_b32 s36, s36, 8")
        e("v_and_b32 v3, 15, v0\nv_and_b32 v5, 12, v0\nv_lshrrev_b32 v2, 4, v1\nv_and_b32 v6, 3, v0\nv_lshl_add_u32 v47, v2, 2, v6\nv_lshlrev_b32 v47, 4, v47\nv_lshl_add_u32 v5, v5, 6, v47\nv_xor_b32 v5, s36, v5")
        e("v_lshlrev_b32 v6, 10, v2\nv_lshl_add_u32 v6, v3, 4, v6\nv_xor_b32 v6, s36, v6")
        issue_to(iW4 + 1)
        s.masks()
        issue_to(iW4 + 1)
        e("s_cmp_ge_u32 s7, 4\ns_cselect_b32 s36, 9, 8\ns_lshl_b32 s37, s7, 9\ns_and_b32 s38, s7, 1\ns_lshl_b32 s38, s38, 10\ns_and_b32 s39, s7, 2\ns_lshl_b32 s39, s39, 7\ns_add_u32 s38, s38, s39\ns_add_u32 s38, s38, 0x800")
        e("s_cmp_ge_u32 s7, 4\ns_cselect_b32 s37, s38, s37")
        e("v_lshrrev_b32 v12, 3, v3\nv_lshlrev_b32 v12, s36, v12\nv_and_b32 v13, 7, v3\nv_lshl_add_u32 v12, v13, 5, v12\nv_and_b32 v13, 1, v2\nv_lshl_add_u32 v12, v13, 4, v12\nv_add_u32 v13, s37, v12")
        e("v_lshlrev_b32 v14, 5, v14\ns_mov_b32 s54, 0x00ff00ff\ns_mov_b32 s55, 0xff00ff00")
        issue_to(nk0 + o["kx"] + W)
        e("s_barrier")
        e(f"ds_read_b128 v[40:43], v14 offset:{L_XN}\nds_read_b32 v44, v14 offset:{L_XN+16}\ns_waitcnt lgkmcnt(0)")
        for u in range(5):
            for k in range(4): e(f"v_and_b32 v{16+4*u+k}, v{40+u}, v{8+k}")
        issue_to(iW4 + W)
        wait_for(iW4)
        s.stamp(2)
        for u in range(5):
            e(f"{MF} v[40:43], v[{16+4*u}:{19+4*u}], v[{RW+4*u}:{RW+3+4*u}], {'0' if u == 0 else 'v[40:43]'}")
        e("s_mul_i32 s33, s33, 1664525\ns_add_u32 s33, s33, 1013904223\ns_mov_b64 exec, s[54:55]")
        for t in range(4):
            e(f"s_mov_b32 s{40+2*t}, {0x000f000f << (4*t)}\ns_mov_b32 s{41+2*t}, s{40+2*t}")
        e(f"ds_write_b128 v13, v[40:43] offset:{L_P1}\ns_mov_b64 exec, -1\ns_waitcnt lgkmcnt(0)\ns_barrier")
        issue_to(iW4 + W + 1)
        for c in range(1, 4):
            e(f"s_mov_b32 s{46+2*c}, {0x11111111 << c}\ns_mov_b32 s{47+2*c}, s{46+2*c}")
        e(f"s_lshl3_add_u32 s36, s4, s7\ns_mul_i32 s37, s5, 160\ns_mul_i32 s38, s36, {16*1280}\ns_add_u32 s38, s38, s37\ns_lshl3_add_u32 s36, s32, s7\ns_mul_i32 s36, s36, {8*1280}\ns_add_u32 s36, s36, s37")
        e(f"v_min_u32 v12, 9, v3\nv_lshlrev_b32 v12, 4, v12\nv_mul_u32_u24 v13, {2*1280}, v2\nv_add3_u32 v15, v12, v13, s36\nv_lshl_add_u32 v7, v13, 1, v12\nv_add_u32 v7, s38, v7")
        issue_to(iW4 + W + 2)
        e("s_lshl_b32 s36, s7, 9\nv_lshlrev_b32 v46, 5, v3\nv_lshl_add_u32 v46, v2, 4, v46\nv_add_u32 v4, s36, v46\ns_mul_i32 s36, s7, 320\nv_add_u32 v46, s36, v46")
        e("s_lshl_b32 s36, s7, 3\nv_mov_b32 v12, s36\ns_lshl_b32 s36, s7, 5\nv_lshl_add_u32 v14, v2, 3, s36")
        e(f"s_lshl_b32 s36, s4, 13\ns_lshl_b32 s37, s7, 7\ns_add_u32 s36, s36, s37\ns_add_u32 s36, s36, {X2}")
        e("v_lshrrev_b32 v13, 1, v3\nv_lshlrev_b32 v13, 10, v13\nv_lshl_add_u32 v13, v2, 5, v13\nv_and_b32 v45, 1, v3\nv_lshl_add_u32 v13, v45, 4, v13\nv_add_u32 v13, s36, v13")
        s.pad(True)
        kq = o["kq"]; nxt = [kq]
        def tick():
            nxt[0] += 1
            if nxt[0] <= 20 + WO - 1 and nxt[0] <= 24: issue_to(nxt[0])
        issue_to(kq)
        s.stamp(3)
        e("s_barrier")
        s.stamp(4)
        e(f"ds_read_b128 v[32:35], v47 offset:{L_Q}\nds_read_b64 v[{RW}:{RW+1}], v14 offset:{L_H}\ns_waitcnt lgkmcnt(0)")
        for t in range(4):
            for k in range(4): e(f"v_cndmask_b32 v{16+4*t+k}, 0, v{32+k}, s[{40+2*t}:{41+2*t}]")
        wait_for(12)
        for t in range(4):
            for Gp in range(2):
                d = 36 + 4 * Gp; b = RK + 4 * (4 * Gp + t)
                e(f"{MF} v[{d}:{d+3}], v[{16+4*t}:{19+4*t}], v[{b}:{b+3}], {'0' if t == 0 else f'v[{d}:{d+3}]'}")
        tick()
        for u in range(2):
            for k in range(4): e(f"v_and_b32 v{RW+4+4*u+k}, v{RW+u}, v{8+k}")
        for c in range(1, 4):
            e(f"v_cndmask_b32 v36, v36, v{36+c}, s[{46+2*c}:{47+2*c}]\nv_cndmask_b32 v40, v40, v{40+c}, s[{46+2*c}:{47+2*c}]")
        for qp in ("[1,0,3,2]", "[2,3,0,1]"):
            e(f"v_add_f32_dpp v36, v36, v36 quad_perm:{qp} {DPP}\nv_add_f32_dpp v40, v40, v40 quad_perm:{qp} {DPP}")
        e("v_cvt_pk_bf16_f32 v37, v36, v40\nv_lshlrev_b32 v36, 16, v37\nv_and_b32 v40, 0xffff0000, v37")
        e(f"v_mul_f32 v36, {f2u(128**-0.5)}, v36\nv_mul_f32 v40, {f2u(128**-0.5)}, v40")
        e("v_cvt_pk_bf16_f32 v37, v36, v40\nv_lshlrev_b32 v36, 16, v37\nv_and_b32 v40, 0xffff0000, v37")
        tick()
        e(f"v_max_f32 v44, v36, v40\nv_max_f32_dpp v44, v44, v44 row_ror:4 {DPP}\nv_max_f32_dpp v44, v44, v44 row_ror:8 {DPP}")
        s.xrows("v_max_f32", 44, 37)
        e(f"v_sub_f32 v36, v36, v44\nv_sub_f32 v40, v40, v44\nv_mul_f32 v36, {LOG2E}, v36\nv_mul_f32 v40, {LOG2E}, v40\nv_exp_f32 v36, v36\nv_exp_f32 v40, v40")
        e(f"v_add_f32 v45, v36, v40\nv_cvt_pk_bf16_f32 v38, v36, v36\nv_cvt_pk_bf16_f32 v39, v40, v40")
        e(f"v_add_f32_dpp v45, v45, v45 row_ror:4 {DPP}\nv_add_f32_dpp v45, v45, v45 row_ror:8 {DPP}")
        s.xrows("v_add_f32", 45, 37)
        e(f"ds_write_b64 v12, v[44:45] offset:{L_ML}")
        tick()
        e("s_waitcnt lgkmcnt(0)\ns_barrier")
        for t in range(8):
            for k in range(4): e(f"v_and_b32_dpp v{RK+4*t+k}, v{38+t//4}, v{8+k} row_newbcast:{4*(t%4)} {DPP}")
            if t == 3: tick(); s.pad(True)
        e("v_mov_b32 v47, s33\nv_mov_b32 v36, 0\nv_mov_b32 v37, 0\nv_mov_b32 v38, 0\nv_mov_b32 v39, 0")
        e(f"s_mov_b32 s39, {SPIN}\ns_mov_b32 s48, 0x03ff03ff\ns_mov_b32 s49, 0")
        s.stamp(5)
        if o["sprio"]: e(f"s_setprio {o['sprio']}")
        for t in range(8):
            k = 13 + t
            tgt = max(i for i in range(25) if i - win(i) <= k)
            issue_to(tgt)
            wait_for(k)
            e(f"{MF} v[40:43], v[{RK+4*t}:{RK+3+4*t}], v[{RV+4*t}:{RV+3+4*t}], {'0' if t == 0 else 'v[40:43]'}")
        s.stamp(6)
        early_wd = WO >= 5
        if early_wd:
            e("s_cmp_ge_u32 s32, 27\ns_cbranch_scc1 L_nowd0")
            issue_to(26 if WO >= 6 else 25, pace=False)
            e("L_nowd0:")
        e("s_mov_b32 exec_hi, 0")
        e(f"ds_write_b128 v4, v[40:43] offset:{L_OW}\ns_mov_b32 exec_hi, -1\ns_waitcnt lgkmcnt(0)\ns_barrier")
        issue_to(24)
        e("s_cmp_ge_u32 s32, 27\ns_cbranch_scc1 L_nowd")
        issue_to(26)
        pa = o["pollat"]
        if pa: e(f"s_waitcnt vmcnt({pa})\nglobal_load_dwordx4 v[32:35], v13, s[30:31] sc1\ns_waitcnt vmcnt(1)")
        else: e("s_waitcnt vmcnt(0)")
        for u in range(2): e(f"{MF} v[36:39], v[{RW+4+4*u}:{RW+7+4*u}], v[{RD+4*u}:{RD+3+4*u}], v[36:39]")
        s.stamp(7)
        if pa: e("s_branch L_chk2")
        e("L_nowd:")
        e(f"s_waitcnt vmcnt({min(pa, 1)})")
        e("L_poll2:")
        e("global_load_dwordx4 v[32:35], v13, s[30:31] sc1")
        e("L_chk2:\ns_sub_u32 s39, s39, 1\ns_cbranch_scc1 L_got2\ns_waitcnt vmcnt(0)")
        e("v_cmp_ne_u32 vcc, v35, v47\ns_cbranch_vccnz L_poll2")
        e("L_got2:\ns_waitcnt vmcnt(0)")
        s.stamp(8)
        steps = ["quad_perm:[2,3,0,1]", "row_ror:4", "row_ror:8"]
        e(f"v_max_f32_dpp v12, v34, v34 {steps[0]} {DPP}\nv_max_f32_dpp v12, v12, v12 {steps[1]} {DPP}\nv_max_f32_dpp v12, v12, v12 {steps[2]} {DPP}")
        e("v_sub_f32 v34, v34, v12\nv_exp_f32 v34, v34\nv_mul_f32 v32, v32, v34\nv_mul_f32 v33, v33, v34")
        for stp in steps:
            for v in (34, 32, 33): e(f"v_add_f32_dpp v{v}, v{v}, v{v} {stp} {DPP}")
        e("v_rcp_f32 v34, v34\nv_mul_f32 v32, v32, v34\nv_mul_f32 v33, v33, v34\nv_cvt_pk_bf16_f32 v32, v32, v32\nv_cvt_pk_bf16_f32 v33, v33, v33")
        for u in range(4):
            for k in range(4): e(f"v_and_b32_dpp v{16+4*u+k}, v{32+u%2}, v{8+k} row_newbcast:{u//2} {DPP}")
            if u >= 1: e(f"{MF} v[36:39], v[{12+4*u}:{15+4*u}], v[{RO+4*u-4}:{RO+4*u-1}], v[36:39]")
        e(f"{MF} v[36:39], v[28:31], v[{RO+12}:{RO+15}], v[36:39]")
        e("s_mov_b64 exec, s[48:49]")
        e(f"ds_write_b128 v46, v[36:39] offset:{L_OUT}\ns_waitcnt lgkmcnt(0)\ns_barrier")
        if st: e("s_mov_b64 exec, -1")
        s.stamp(9)
        s.end()

        e("L_H:")
        if st:
            for i in range(1, 14): e(f"s_mov_b32 s{60+2*i}, 0")
        if o["prio"]: e(f"s_setprio {o['prio']}")
        e("s_load_dword s33, s[30:31], 0\ns_mov_b32 s32, s4")
        e(f"s_lshl_b32 s36, s4, 13\ns_lshl_b32 s37, s5, 10\ns_add_u32 s36, s36, s37\ns_add_u32 s36, s36, {X2}\nv_add_u32 v8, s36, v5")
        e(f"s_mul_i32 s36, s5, 20480\ns_lshl_b32 s37, s4, 7\ns_add_u32 s36, s36, s37\ns_add_u32 s36, s36, {X3}")
        e("v_lshrrev_b32 v9, 3, v1\nv_lshlrev_b32 v9, 12, v9\nv_and_b32 v12, 7, v1\nv_lshl_add_u32 v9, v12, 4, v9\nv_add_u32 v9, s36, v9")
        e("s_cmp_eq_u32 s3, 0\ns_cbranch_scc0 L_H1")
        s.stamp(1)
        e("v_mul_u32_u24 v12, 205, v1\nv_lshrrev_b32 v12, 10, v12\nv_mad_u32_u24 v12, v12, 12, v6")
        e("v_add_u32 v13, 16, v1\nv_mul_u32_u24 v14, 205, v13\nv_lshrrev_b32 v14, 10, v14\nv_lshlrev_b32 v13, 2, v13\nv_mad_u32_u24 v13, v14, 12, v13")
        e("s_waitcnt vmcnt(2)")
        for i in range(5):
            e(f"v_lshlrev_b32 v{24+2*i}, 16, v{16+i}\nv_and_b32 v{25+2*i}, 0xffff0000, v{16+i}")
        e("v_add_f32 v34, v24, v25")
        for i in range(2, 10): e(f"v_add_f32 v34, v34, v{24+i}")
        s.wsum(34, 35)
        e(f"v_mul_f32 v34, {f2u(1/640)}, v34")
        for i in range(10): e(f"v_sub_f32 v{24+i}, v{24+i}, v34")
        e("v_mul_f32 v36, v24, v24")
        for i in range(1, 10): e(f"v_fmac_f32 v36, v{24+i}, v{24+i}")
        s.wsum(36, 35)
        e(f"v_mul_f32 v36, {f2u(1/640)}, v36")
        s.rbf(34); s.rbf(36)
        e(f"v_add_f32 v36, {f2u(1e-5)}, v36"); s.rbf(36)
        e("v_sqrt_f32 v36, v36"); s.rbf(36)
        e("v_rcp_f32 v36, v36\ns_waitcnt vmcnt(0)")
        e("v_lshlrev_b32 v21, 16, v21\nv_lshlrev_b32 v22, 16, v22\nv_sub_f32 v21, v21, v34\nv_sub_f32 v22, v22, v34")
        s.rbf(21); s.rbf(22)
        e("v_mul_f32 v21, v21, v36\nv_mul_f32 v22, v22, v36\nv_cvt_pk_bf16_f32 v21, v21, v21\nv_cvt_pk_bf16_f32 v22, v22, v22")
        e(f"ds_write_b32 v12, v21 offset:{L_XN}\nds_write_b32 v13, v22 offset:{L_XN}")
        if o["prew"]:
            e("s_waitcnt lgkmcnt(0)\nv_mov_b32 v47, s33")
            if o["prew"] & 1: e("global_store_dwordx4 v8, v[44:47], s[30:31] sc1")
            if o["prew"] & 2: e("s_movk_i32 exec_hi, 0xff\nglobal_store_dwordx4 v9, v[44:47], s[30:31] sc1\ns_mov_b32 exec_hi, -1")
        e("s_branch L_Hx")
        e("L_H1:")
        e("s_cmp_ge_u32 s32, 27\ns_waitcnt vmcnt(0)\ns_cbranch_scc1 L_RED")
        e("L_Hx:")
        s.tag()
        s.stamp(2)
        e("s_barrier")
        e(f"s_mul_i32 s36, s3, {X1G-X1Q}\ns_lshl_b32 s37, s4, 13\ns_add_u32 s36, s36, s37\ns_add_u32 s36, s36, {X1Q}\ns_lshl_b32 s37, s5, 10\ns_add_u32 s37, s37, s36\ns_add_u32 s36, s36, 0x1000")
        e("v_add_u32 v6, s37, v5\nv_add_u32 v7, s36, v5\nv_mov_b32 v47, s33\ns_lshl_b32 s36, s3, 11\nv_lshlrev_b32 v14, 3, v1\nv_add_u32 v12, s36, v14")
        e(f"s_mov_b32 s39, {SPIN}")
        e("s_barrier")
        for k in range(4): e(f"ds_read_b64 v[{16+2*k}:{17+2*k}], v12 offset:{L_P1+512*k}")
        e("s_waitcnt lgkmcnt(0)")
        e("v_add_f32 v16, v16, v18\nv_add_f32 v17, v17, v19\nv_add_f32 v20, v20, v22\nv_add_f32 v21, v21, v23\nv_add_f32 v44, v16, v20\nv_add_f32 v45, v17, v21")
        e("global_store_dwordx4 v6, v[44:47], s[30:31] sc1")
        s.stamp(3)
        if o["ackwait"]: e("s_waitcnt vmcnt(0)")
        s.stamp(4)
        e("L_poll1:")
        for p in range(8): e(f"global_load_dwordx4 v[{48+4*p}:{51+4*p}], v7, s[30:31] offset:{(p-4)*1024} sc1")
        e("s_sub_u32 s39, s39, 1\ns_cbranch_scc1 L_got1")
        e("s_waitcnt vmcnt(0)")
        e("v_min3_u32 v13, v51, v55, v59\nv_max3_u32 v15, v51, v55, v59\nv_min3_u32 v13, v13, v63, v67\nv_max3_u32 v15, v15, v63, v67")
        e("v_min3_u32 v13, v13, v71, v75\nv_max3_u32 v15, v15, v71, v75\nv_min3_u32 v13, v13, v79, v47\nv_max3_u32 v15, v15, v79, v47")
        e("v_cmp_ne_u32 vcc, v13, v15\ns_cbranch_vccnz L_poll1")
        e("L_got1:\ns_waitcnt vmcnt(0)")
        s.stamp(5)
        for p in range(1, 8): e(f"v_add_f32 v48, v48, v{48+4*p}\nv_add_f32 v49, v49, v{49+4*p}")
        e("v_cvt_pk_bf16_f32 v48, v48, v49")
        e("s_cmp_eq_u32 s3, 0\ns_cbranch_scc1 L_H0b")
        e("v_mov_b32 v49, v48\nv_permlane32_swap_b32 v48, v49")
        e("v_lshlrev_b32 v50, 16, v48\nv_and_b32 v51, 0xffff0000, v48\nv_lshlrev_b32 v54, 16, v49\nv_and_b32 v55, 0xffff0000, v49")
        e(f"v_mul_f32 v52, {f2u(-1.4426950408889634)}, v50\nv_mul_f32 v53, {f2u(-1.4426950408889634)}, v51\nv_exp_f32 v52, v52\nv_exp_f32 v53, v53")
        e("v_add_f32 v52, 1.0, v52\nv_add_f32 v53, 1.0, v53\nv_rcp_f32 v52, v52\nv_rcp_f32 v53, v53")
        s.rbf(52); s.rbf(53)
        e("v_mul_f32 v52, v52, v54\nv_mul_f32 v53, v53, v55\nv_cvt_pk_bf16_f32 v52, v52, v52\nv_cvt_pk_bf16_f32 v53, v53, v53\nv_and_b32 v14, 0xff, v14")
        e(f"ds_write_b64 v14, v[52:53] offset:{L_H}\ns_waitcnt lgkmcnt(0)")
        s.stamp(6)
        if st: e("s_barrier\ns_barrier\ns_barrier\ns_barrier")
        s.end()
        s.pad(False)
        e("L_H0b:")
        e(f"v_lshlrev_b32 v12, 2, v1\nv_mov_b32 v13, 0\nds_write_b32 v12, v48 offset:{L_Q}")
        e("s_waitcnt lgkmcnt(0)\ns_barrier")
        e("s_barrier")
        for k in range(4): e(f"ds_read_b128 v[{16+4*k}:{19+4*k}], v13 offset:{L_ML+16*k}")
        e("s_waitcnt lgkmcnt(0)")
        s.stamp(6)
        e("v_max3_f32 v12, v16, v18, v20\nv_max3_f32 v12, v12, v22, v24\nv_max3_f32 v12, v12, v26, v28\nv_max_f32 v12, v12, v30")
        for k in range(8): e(f"v_sub_f32 v{16+2*k}, v{16+2*k}, v12")
        for k in range(8): e(f"v_mul_f32 v{16+2*k}, {LOG2E}, v{16+2*k}")
        for k in range(8): e(f"v_exp_f32 v{16+2*k}, v{16+2*k}")
        e("v_mul_f32 v15, v16, v17")
        for k in range(1, 8): e(f"v_fmac_f32 v15, v{16+2*k}, v{17+2*k}")
        e(f"v_log_f32 v46, v15\nv_rcp_f32 v15, v15\nv_fmac_f32 v46, {LOG2E}, v12")
        for k in range(8): e(f"v_mul_f32 v{16+2*k}, v{16+2*k}, v15")
        s.stamp(7)
        if st: e("s_waitcnt lgkmcnt(0)")
        e("s_barrier")
        for k in range(8): e(f"ds_read_b64 v[{48+2*k}:{49+2*k}], v14 offset:{L_OW+512*k}")
        for k in range(8):
            e(f"s_waitcnt lgkmcnt({7-k})")
            op = "v_mul_f32" if k == 0 else "v_fmac_f32"
            e(f"{op} v44, v{16+2*k}, v{48+2*k}\n{op} v45, v{16+2*k}, v{49+2*k}")
        e("global_store_dwordx4 v8, v[44:47], s[30:31] sc1")
        s.stamp(8)
        if st: e("s_waitcnt lgkmcnt(0)")
        e("s_movk_i32 exec_hi, 0xff\ns_barrier")
        for k in range(8): e(f"ds_read_b64 v[{48+2*k}:{49+2*k}], v14 offset:{L_OUT+320*k}")
        for k in range(1, 8):
            e(f"s_waitcnt lgkmcnt({7-k})")
            d = 44 if k == 7 else 48
            e(f"v_add_f32 v{d}, v48, v{48+2*k}\nv_add_f32 v{d+1}, v49, v{49+2*k}")
        e("global_store_dwordx4 v9, v[44:47], s[30:31] sc1")
        s.stamp(10)
        if st: e("s_mov_b64 exec, -1")
        s.end()

        e("L_RED:")
        e(f"s_sub_u32 s7, s32, 27\ns_mul_i32 s36, s5, 20480\ns_lshl_b32 s37, s7, 12\ns_add_u32 s36, s36, s37\ns_add_u32 s36, s36, {X3}\nv_add_u32 v4, s36, v5")
        e("s_mul_i32 s36, s5, 160\ns_lshl_b32 s37, s7, 5\ns_add_u32 s36, s36, s37\nv_and_b32 v6, 7, v1\nv_lshl_add_u32 v6, v6, 2, s36")
        e("global_load_dword v20, v6, s[8:9]")
        s.tag()
        e("s_barrier\ns_barrier")
        e(f"v_mov_b32 v47, s33\ns_mov_b32 s39, {SPIN}\ns_waitcnt vmcnt(0)\nv_lshlrev_b32 v21, 16, v20\nv_and_b32 v20, 0xffff0000, v20")
        e("s_barrier\ns_barrier\ns_barrier\ns_barrier")
        e("L_poll3:")
        for k in range(4): e(f"global_load_dwordx4 v[{48+4*k}:{51+4*k}], v4, s[30:31] offset:{1024*k} sc1")
        e("s_sub_u32 s39, s39, 1\ns_cbranch_scc1 L_got3\ns_waitcnt vmcnt(0)")
        e("v_min3_u32 v12, v51, v55, v47\nv_max3_u32 v13, v51, v55, v47\nv_min3_u32 v12, v12, v59, v63\nv_max3_u32 v13, v13, v59, v63")
        e("v_cmp_ne_u32 vcc, v12, v13\ns_cbranch_vccnz L_poll3")
        e("L_got3:\ns_waitcnt vmcnt(0)")
        s.stamp(11)
        e("v_add_f32 v48, v48, v52\nv_add_f32 v49, v49, v53\nv_add_f32 v56, v56, v60\nv_add_f32 v57, v57, v61\nv_add_f32 v48, v48, v56\nv_add_f32 v49, v49, v57")
        e(f"v_add_f32_dpp v48, v48, v48 row_ror:8 {DPP}\nv_add_f32_dpp v49, v49, v49 row_ror:8 {DPP}")
        e("v_mov_b32 v50, v48\nv_mov_b32 v51, v49\nv_permlane16_swap_b32 v48, v50\nv_permlane16_swap_b32 v49, v51\nv_add_f32 v48, v48, v50\nv_add_f32 v49, v49, v51")
        e("v_mov_b32 v50, v48\nv_mov_b32 v51, v49\nv_permlane32_swap_b32 v48, v50\nv_permlane32_swap_b32 v49, v51\nv_add_f32 v48, v48, v50\nv_add_f32 v49, v49, v51")
        e("v_add_f32 v48, v48, v21\nv_add_f32 v49, v49, v20\nv_cvt_pk_bf16_f32 v48, v48, v49")
        e(f"s_mov_b64 exec, 0xff\nglobal_store_dword v6, v48, s[26:27] {o['outf']}")
        e("s_cmp_eq_u32 s2, 27\ns_cbranch_scc0 L_Rend")
        e("s_mov_b64 exec, 1\nv_mov_b32 v12, 0\nglobal_store_dword v12, v47, s[30:31] sc1")
        e("L_Rend:")
        if o.get("pad"):
            e(f"L_padw:\ns_memrealtime s[92:93]\ns_waitcnt lgkmcnt(0)\ns_sub_u32 s92, s92, s90\ns_cmp_lt_u32 s92, {o['pad']}\ns_cbranch_scc1 L_padw")
        if st:
            e("s_mov_b64 exec, -1\ns_waitcnt vmcnt(0)")
            s.stamp(12)
            e("L_stamp:\ns_waitcnt lgkmcnt(0)")
            e("s_getreg_b32 s56, hwreg(HW_REG_HW_ID, 0, 16)\ns_getreg_b32 s57, hwreg(HW_REG_XCC_ID, 0, 4)\ns_lshl_b32 s57, s57, 16\ns_or_b32 s56, s56, s57")
            e("v_mov_b32 v9, 0\nv_writelane_b32 v9, s56, 0")
            for i in range(14): e(f"v_writelane_b32 v9, s{60+2*i}, {i+1}")
            e(f"s_mul_i32 s56, s2, 10\ns_add_u32 s56, s56, s3\ns_lshl_b32 s56, s56, 6\ns_add_u32 s56, s56, 0x4000000")
            e("v_lshlrev_b32 v10, 2, v1\nv_add_u32 v10, s56, v10\ns_mov_b64 exec, 0xffff\nglobal_store_dword v10, v9, s[30:31]")
        e("L_exit:\ns_endpgm")
        e(f""".section .rodata,"a"
.p2align 6
.amdhsa_kernel {KN}
  .amdhsa_next_free_vgpr {o['vg']}
  .amdhsa_next_free_sgpr 96
  .amdhsa_accum_offset {o['vg']}
  .amdhsa_group_segment_fixed_size 0
  .amdhsa_kernarg_size 96
  .amdhsa_user_sgpr_count 2
  .amdhsa_user_sgpr_kernarg_segment_ptr 1
  .amdhsa_system_sgpr_workgroup_id_x 1
  .amdhsa_float_denorm_mode_32 3
.end_amdhsa_kernel""")
        t = "\n".join(s.L)
        t = t.replace("WARMJUMP", "\n".join(f"s_cmp_eq_u32 s7, {k}\ns_cbranch_scc1 L_pad{k}" for k in range(s.npad)))
        return hz.fix(t) + "\n"

if __name__ == "__main__":
    out = sys.argv[1]; o = {}
    for a in sys.argv[2:]:
        k, v = a.split("=")
        o[k] = int(v) if v.lstrip("-").isdigit() else v.replace("+", " ")
    open(out, "w").write(G3(**o).build())
```

```python
import sys, struct
import hz
from gen import G, KN, f2u, LOG2E, DPP, X1Q, X1G, X2, X3, SPIN
L_XN, L_ML, L_Q, L_H, L_P1, L_OW, L_OUT = 0, 512, 576, 832, 1088, 1088 + 4096, 1088 + 8192
LDS_USED = L_OUT + 4096
RW, RK, RV, RO = 48, 68, 100, 132
MF = "v_mfma_f32_16x16x32_bf16"

X3B = X3 + 0x28000

class G4(G):
    def __init__(s, **o):
        d = dict(nt="nt", stamps=False, lds=LDS_USED, ackwait=1, W=3, kq=16, kx=3, WO=3, vg=152, prio=0, nk0=0, prew=3, pollat=0,
                 warm=0, outf="", sprio=0, ng=8, nost=0, nb=-1, ne=0, stf1='sc1', stf2='sc1', dual=0, ldf='sc1', ldf3='sc1', stf='sc1', W0=0)
        d.update(o); super().__init__(**d); s.npad = 0
    def pad(s, inline):
        if not s.o["warm"]: return
        k = s.npad; s.npad += 1
        if inline: s.e(f"s_branch L_over{k}")
        s.e(f"L_pad{k}:\ns_branch L_warmed")
        if inline: s.e(f"L_over{k}:")
    def build(s):
        e = s.e; o = s.o; nt = o["nt"]; W = o["W"]; WO = o["WO"]; nk0 = o["nk0"]; st = o["stamps"]; W0 = o["W0"] or W
        e(f"; @launch grid=(256,1,1) block=(640,1,1) lds={o['lds']}")
        e('.amdgcn_target "amdgcn-amd-amdhsa--gfx950"\n.text')
        e(f".globl {KN}\n.p2align 8\n.type {KN},@function\n{KN}:")
        s.stamp(0)
        if o.get("pad"): e("s_memrealtime s[90:91]")
        e("s_load_dwordx16 s[8:23], s[0:1], 0\ns_load_dwordx8 s[24:31], s[0:1], 64")
        e("v_readfirstlane_b32 s3, v0\ns_lshr_b32 s5, s2, 5\ns_cmp_ge_u32 s5, 8\ns_cbranch_scc1 L_exit")
        e("s_lshr_b32 s3, s3, 6\nv_and_b32 v1, 63, v0\ns_and_b32 s4, s2, 31\ns_sub_u32 s7, s3, 2\ns_cbranch_scc0 L_S")
        e("s_mul_i32 s6, s5, 80\nv_lshlrev_b32 v5, 4, v1\nv_lshlrev_b32 v6, 2, v1\nv_add_lshl_u32 v7, v1, s6, 1\ns_waitcnt lgkmcnt(0)")
        e("global_load_dwordx4 v[16:19], v5, s[8:9]\nglobal_load_dword v20, v6, s[8:9] offset:1024")
        e("global_load_ushort v21, v7, s[8:9]\nglobal_load_ushort v22, v7, s[8:9] offset:32")
        e("s_branch L_H")
        e("L_S:")
        e("s_movk_i32 s34, 0x2000\ns_cmp_ge_u32 s7, 4\ns_cselect_b32 s36, 3, 4\ns_cmovk_i32 s34, 0xd80\ns_cselect_b32 s38, 27, 32")
        e("v_bfe_u32 v14, v0, s36, 4\nv_bfe_u32 v6, v0, 0, s36\ns_mul_i32 s35, s34, 5\nv_lshl_add_u32 v4, s5, 4, v14\ns_lshl_b32 s37, s4, s36")
        e("v_mul_u32_u24 v4, s35, v4\nv_add_u32 v6, s37, v6\nv_lshl_add_u32 v4, v6, 4, v4")
        e("s_cmp_ge_u32 s7, 6\ns_waitcnt lgkmcnt(0)\ns_cselect_b64 s[18:19], s[22:23], s[20:21]\ns_cmp_ge_u32 s7, 4\ns_cselect_b64 s[18:19], s[18:19], s[14:15]")
        e("s_cmp_ge_u32 s4, s38\ns_cbranch_scc1 L_now1")
        ko = [t * 1024 for t in range(8)]; vo = [(t // 4) * 4096 + (t % 4) * 256 for t in range(8)]
        KL = [(f"v_xor_b32 v5, {ko[t]^ko[t-1]}, v5\n" if t else "") + f"global_load_dwordx4 v[{RK+4*t}:{RK+3+4*t}], v5, s[10:11] {nt}" for t in range(8)]
        VL = [(f"v_xor_b32 v6, {vo[t]^vo[t-1]}, v6\n" if t else "") + f"global_load_dwordx4 v[{RV+4*t}:{RV+3+4*t}], v6, s[12:13] {nt}" for t in range(8)]
        WL = [("v_add_u32 v4, s34, v4\n" if u else "") + f"global_load_dwordx4 v[{RW+4*u}:{RW+3+4*u}], v4, s[18:19] {nt}" for u in range(5)]
        OL = [f"global_load_dwordx4 v[{RO+4*u}:{RO+3+4*u}], v7, s[18:19] offset:{u*1280} {nt}" for u in range(4)]
        ne = o["ne"]; nb = o["nb"]
        loads = KL[:nk0] + WL + KL[nk0:] + OL[:ne] + VL + OL[ne:]
        iV0 = 13 + ne
        iW4 = nk0 + 4
        issued = [0]
        def win(k): return W0 if k <= iW4 else (W if k < iV0 + 8 else WO)
        def issue_to(k, pace=True):
            while issued[0] <= k:
                i = issued[0]
                pre, _, ld = loads[i].rpartition("\n")
                if pre: e(pre)
                if pace and i >= win(i): e(f"s_waitcnt vmcnt({win(i)-1})")
                e(ld); issued[0] += 1
        def wait_for(k):
            assert k < issued[0]
            e(f"s_waitcnt vmcnt({issued[0]-1-k})")
        issue_to(W0 - 1)
        s.stamp(1)
        issue_to(iW4)
        e("L_now1:")
        if st:
            for i in range(2, 14): e(f"s_mov_b32 s{60+2*i}, 0")
        e("s_load_dword s33, s[30:31], 0\ns_mov_b32 s32, s4")
        e("s_xor_b32 s37, s7, s5\ns_xor_b32 s37, s37, s4\ns_and_b32 s37, s37, 7\ns_and_b32 s38, s37, 3\ns_lshl2_add_u32 s37, s37, s38")
        e("s_lshl2_add_u32 s36, s4, 3\ns_lshl3_add_u32 s36, s36, s5\ns_lshl3_add_u32 s36, s36, s7\ns_lshl_b32 s36, s36, 5\ns_or_b32 s36, s36, s37\ns_lshl_b32 s36, s36, 8")
        e("v_and_b32 v3, 15, v0\nv_and_b32 v5, 12, v0\nv_lshrrev_b32 v2, 4, v1\nv_and_b32 v6, 3, v0\nv_lshl_add_u32 v47, v2, 2, v6\nv_lshlrev_b32 v47, 4, v47\nv_lshl_add_u32 v5, v5, 6, v47\nv_xor_b32 v5, s36, v5")
        e("v_lshlrev_b32 v6, 10, v2\nv_lshl_add_u32 v6, v3, 4, v6\nv_xor_b32 v6, s36, v6")
        issue_to(iW4 + 1)
        s.masks()
        issue_to(iW4 + 1)
        e("s_cmp_ge_u32 s7, 4\ns_cselect_b32 s36, 9, 8\ns_lshl_b32 s37, s7, 9\ns_and_b32 s38, s7, 1\ns_lshl_b32 s38, s38, 10\ns_and_b32 s39, s7, 2\ns_lshl_b32 s39, s39, 7\ns_add_u32 s38, s38, s39\ns_add_u32 s38, s38, 0x800")
        e("s_cmp_ge_u32 s7, 4\ns_cselect_b32 s37, s38, s37")
        e("v_lshrrev_b32 v12, 3, v3\nv_lshlrev_b32 v12, s36, v12\nv_and_b32 v13, 7, v3\nv_lshl_add_u32 v12, v13, 5, v12\nv_and_b32 v13, 1, v2\nv_lshl_add_u32 v12, v13, 4, v12\nv_add_u32 v13, s37, v12")
        e("v_lshlrev_b32 v14, 5, v14\ns_mov_b32 s54, 0x00ff00ff\ns_mov_b32 s55, 0xff00ff00")
        issue_to(nk0 + o["kx"] + W)
        e("s_barrier")
        e(f"ds_read_b128 v[40:43], v14 offset:{L_XN}\nds_read_b32 v44, v14 offset:{L_XN+16}\ns_waitcnt lgkmcnt(0)")
        for u in range(5):
            for k in range(4): e(f"v_and_b32 v{16+4*u+k}, v{40+u}, v{8+k}")
        issue_to(iW4 + W)
        wait_for(iW4)
        s.stamp(2)
        for u in range(5):
            e(f"{MF} v[40:43], v[{16+4*u}:{19+4*u}], v[{RW+4*u}:{RW+3+4*u}], {'0' if u == 0 else 'v[40:43]'}")
        e("s_mul_i32 s33, s33, 1664525\ns_add_u32 s33, s33, 1013904223\ns_mov_b64 exec, s[54:55]")
        for t in range(4):
            e(f"s_mov_b32 s{40+2*t}, {0x000f000f << (4*t)}\ns_mov_b32 s{41+2*t}, s{40+2*t}")
        e(f"ds_write_b128 v13, v[40:43] offset:{L_P1}\ns_mov_b64 exec, -1\ns_waitcnt lgkmcnt(0)\ns_barrier")
        issue_to(iW4 + W + 1)
        for c in range(1, 4):
            e(f"s_mov_b32 s{46+2*c}, {0x11111111 << c}\ns_mov_b32 s{47+2*c}, s{46+2*c}")
        e("s_lshl3_add_u32 s36, s4, s7\ns_and_b32 s37, s7, 3\ns_lshl2_add_u32 s37, s4, s37\ns_lshr_b32 s38, s7, 2\ns_lshl1_add_u32 s38, s5, s38\ns_sub_u32 s38, s38, 10")
        e("s_cmp_ge_u32 s4, 27\ns_cselect_b32 s38, 5, s38")
        e("s_cmp_lt_u32 s5, 5\ns_cselect_b64 s[18:19], s[16:17], s[24:25]\ns_cselect_b32 s36, s36, s37\ns_cselect_b32 s38, s5, s38")
        e(f"s_mul_i32 s36, s36, {16*1280}\ns_lshl_b32 s37, s38, 8\ns_add_u32 s36, s36, s37")
        e(f"v_mul_u32_u24 v7, {4*1280}, v2\nv_lshl_add_u32 v7, v3, 4, v7\nv_add_u32 v7, s36, v7")
        e("s_cmp_lt_u32 s38, 5\ns_cselect_b32 s36, -1, 0\nv_and_b32 v7, s36, v7")
        issue_to(iW4 + W + 2)
        e("s_lshl_b32 s36, s7, 9\nv_lshlrev_b32 v4, 5, v3\nv_lshl_add_u32 v4, v2, 4, v4\nv_add_u32 v4, s36, v4")
        e("s_lshl_b32 s36, s7, 3\nv_mov_b32 v12, s36\ns_and_b32 s36, s7, 3\ns_lshl_b32 s36, s36, 6\nv_lshl_add_u32 v14, v2, 4, s36")
        e(f"s_lshl_b32 s36, s4, 13\ns_lshl_b32 s37, s7, 7\ns_add_u32 s36, s36, s37\ns_add_u32 s36, s36, {X2}")
        e("v_lshrrev_b32 v13, 1, v3\nv_lshlrev_b32 v13, 10, v13\nv_lshl_add_u32 v13, v2, 5, v13\nv_and_b32 v45, 1, v3\nv_lshl_add_u32 v13, v45, 4, v13\nv_add_u32 v13, s36, v13")
        s.pad(True)
        kq = o["kq"]; nxt = [kq]
        def tick():
            nxt[0] += 1
            if nxt[0] <= (iV0 + 7 + WO - 1 if nb < 0 else iV0 + 7) and nxt[0] <= 24: issue_to(nxt[0])
        issue_to(kq)
        s.stamp(3)
        e("s_barrier")
        s.stamp(4)
        e(f"ds_read_b128 v[32:35], v47 offset:{L_Q}\nds_read_b128 v[{RW}:{RW+3}], v14 offset:{L_H}\ns_waitcnt lgkmcnt(0)")
        for t in range(4):
            for k in range(4): e(f"v_cndmask_b32 v{16+4*t+k}, 0, v{32+k}, s[{40+2*t}:{41+2*t}]")
        wait_for(12)
        for t in range(4):
            for Gp in range(2):
                d = 36 + 4 * Gp; b = RK + 4 * (4 * Gp + t)
                e(f"{MF} v[{d}:{d+3}], v[{16+4*t}:{19+4*t}], v[{b}:{b+3}], {'0' if t == 0 else f'v[{d}:{d+3}]'}")
        tick()
        for c in range(1, 4):
            e(f"v_cndmask_b32 v36, v36, v{36+c}, s[{46+2*c}:{47+2*c}]\nv_cndmask_b32 v40, v40, v{40+c}, s[{46+2*c}:{47+2*c}]")
        for qp in ("[1,0,3,2]", "[2,3,0,1]"):
            e(f"v_add_f32_dpp v36, v36, v36 quad_perm:{qp} {DPP}\nv_add_f32_dpp v40, v40, v40 quad_perm:{qp} {DPP}")
        e("v_cvt_pk_bf16_f32 v37, v36, v40\nv_lshlrev_b32 v36, 16, v37\nv_and_b32 v40, 0xffff0000, v37")
        e(f"v_mul_f32 v36, {f2u(128**-0.5)}, v36\nv_mul_f32 v40, {f2u(128**-0.5)}, v40")
        e("v_cvt_pk_bf16_f32 v37, v36, v40\nv_lshlrev_b32 v36, 16, v37\nv_and_b32 v40, 0xffff0000, v37")
        tick()
        e(f"v_max_f32 v44, v36, v40\nv_max_f32_dpp v44, v44, v44 row_ror:4 {DPP}\nv_max_f32_dpp v44, v44, v44 row_ror:8 {DPP}")
        s.xrows("v_max_f32", 44, 37)
        e(f"v_sub_f32 v36, v36, v44\nv_sub_f32 v40, v40, v44\nv_mul_f32 v36, {LOG2E}, v36\nv_mul_f32 v40, {LOG2E}, v40\nv_exp_f32 v36, v36\nv_exp_f32 v40, v40")
        e(f"v_add_f32 v45, v36, v40\nv_cvt_pk_bf16_f32 v38, v36, v36\nv_cvt_pk_bf16_f32 v39, v40, v40")
        e(f"v_add_f32_dpp v45, v45, v45 row_ror:4 {DPP}\nv_add_f32_dpp v45, v45, v45 row_ror:8 {DPP}")
        s.xrows("v_add_f32", 45, 37)
        e(f"ds_write_b64 v12, v[44:45] offset:{L_ML}")
        tick()
        e("s_waitcnt lgkmcnt(0)\ns_barrier")
        for t in range(8):
            for k in range(4): e(f"v_and_b32_dpp v{RK+4*t+k}, v{38+t//4}, v{8+k} row_newbcast:{4*(t%4)} {DPP}")
            if t == 3: tick(); s.pad(True)
        e(f"v_mov_b32 v47, s33\ns_mov_b32 s39, {SPIN}")
        s.stamp(5)
        if o["sprio"]: e(f"s_setprio {o['sprio']}")
        for t in range(8):
            k = iV0 + t
            tgt = max(i for i in range(25) if i - win(i) <= k)
            if nb >= 0: tgt = min(tgt, iV0 + 7)
            issue_to(tgt)
            if nb >= 0 and issued[0] == iV0 + 8: issue_to(iV0 + 7 + nb, pace=False)
            wait_for(k)
            e(f"{MF} v[40:43], v[{RK+4*t}:{RK+3+4*t}], v[{RV+4*t}:{RV+3+4*t}], {'0' if t == 0 else 'v[40:43]'}")
        s.stamp(6)
        e("s_mov_b32 exec_hi, 0")
        e(f"ds_write_b128 v4, v[40:43] offset:{L_OW}\ns_mov_b32 exec_hi, -1\ns_waitcnt lgkmcnt(0)\ns_barrier")
        if nb >= 0: e("s_barrier")
        issue_to(24, pace=nb < 0)
        e("s_cmp_lt_u32 s5, 5\ns_cbranch_scc1 L_attn")
        for u in range(4):
            for k in range(4): e(f"v_and_b32 v{16+4*u+k}, v{RW+u}, v{8+k}")
        for u in range(3):
            e(f"s_waitcnt vmcnt({min(3-u, 4-ne)})\n{MF} v[36:39], v[{16+4*u}:{19+4*u}], v[{RO+4*u}:{RO+3+4*u}], {'0' if u == 0 else 'v[36:39]'}")
        e("s_waitcnt vmcnt(0)")
        s.stamp(7)
        e("s_branch L_lastmf")
        e("L_attn:")
        e(f"s_waitcnt vmcnt({o['pollat']})")
        s.stamp(7)
        e("L_poll2:")
        e(f"global_load_dwordx4 v[32:35], v13, s[30:31] {o['ldf']}")
        e("s_sub_u32 s39, s39, 1\ns_cbranch_scc1 L_got2\ns_waitcnt vmcnt(0)")
        e("v_cmp_ne_u32 vcc, v35, v47\ns_cbranch_vccnz L_poll2")
        e("L_got2:\ns_waitcnt vmcnt(0)")
        s.stamp(8)
        steps = ["quad_perm:[2,3,0,1]", "row_ror:4", "row_ror:8"]
        e(f"v_max_f32_dpp v12, v34, v34 {steps[0]} {DPP}\nv_max_f32_dpp v12, v12, v12 {steps[1]} {DPP}\nv_max_f32_dpp v12, v12, v12 {steps[2]} {DPP}")
        e("v_sub_f32 v34, v34, v12\nv_exp_f32 v34, v34\nv_mul_f32 v32, v32, v34\nv_mul_f32 v33, v33, v34")
        for stp in steps:
            for v in (34, 32, 33): e(f"v_add_f32_dpp v{v}, v{v}, v{v} {stp} {DPP}")
        e("v_rcp_f32 v34, v34\nv_mul_f32 v32, v32, v34\nv_mul_f32 v33, v33, v34\nv_cvt_pk_bf16_f32 v32, v32, v32\nv_cvt_pk_bf16_f32 v33, v33, v33")
        for u in range(4):
            for k in range(4): e(f"v_and_b32_dpp v{16+4*u+k}, v{32+u%2}, v{8+k} row_newbcast:{u//2} {DPP}")
            if u >= 1: e(f"{MF} v[36:39], v[{12+4*u}:{15+4*u}], v[{RO+4*u-4}:{RO+4*u-1}], {'0' if u == 1 else 'v[36:39]'}")
        e("s_nop 0\nL_lastmf:")
        e(f"{MF} v[36:39], v[28:31], v[{RO+12}:{RO+15}], v[36:39]")
        e("s_mov_b32 exec_hi, 0")
        e(f"ds_write_b128 v4, v[36:39] offset:{L_OUT}\ns_waitcnt lgkmcnt(0)\ns_barrier")
        if st: e("s_mov_b64 exec, -1")
        s.stamp(9)
        s.end()

        e("L_H:")
        if st:
            for i in range(1, 14): e(f"s_mov_b32 s{60+2*i}, 0")
        if o["prio"]: e(f"s_setprio {o['prio']}")
        e("s_load_dword s33, s[30:31], 0\ns_mov_b32 s32, s4")
        e(f"s_lshl_b32 s36, s4, 13\ns_lshl_b32 s37, s5, 10\ns_add_u32 s36, s36, s37\ns_add_u32 s36, s36, {X2}\nv_add_u32 v8, s36, v5")
        e("s_lshl_b32 s36, s5, 1\ns_sub_u32 s36, s36, 5\ns_cmp_lt_u32 s5, 5\ns_cselect_b32 s36, s5, s36")
        e(f"s_lshl_b32 s36, s36, 15\ns_lshl_b32 s37, s4, 7\ns_add_u32 s36, s36, s37\ns_add_u32 s36, s36, {X3}")
        e("v_lshrrev_b32 v9, 3, v1\nv_lshlrev_b32 v9, 12, v9\nv_and_b32 v12, 7, v1\nv_lshl_add_u32 v9, v12, 4, v9\nv_add_u32 v9, s36, v9\nv_add_u32 v10, 0x8000, v9")
        e("s_sub_u32 s50, s2, 224\ns_add_u32 s51, s4, 8\ns_cmp_lt_u32 s2, 224\ns_cselect_b32 s50, s51, s50\ns_cmp_lt_u32 s2, 216\ns_cselect_b32 s50, 64, s50")
        e("s_min_u32 s36, s50, 39\ns_lshl_b32 s36, s36, 5\nv_and_b32 v11, 7, v1\nv_lshl_add_u32 v11, v11, 2, s36")
        e("s_cmp_eq_u32 s3, 0\ns_cbranch_scc0 L_H1")
        s.stamp(1)
        e("v_mul_u32_u24 v12, 205, v1\nv_lshrrev_b32 v12, 10, v12\nv_mad_u32_u24 v12, v12, 12, v6")
        e("v_add_u32 v13, 16, v1\nv_mul_u32_u24 v14, 205, v13\nv_lshrrev_b32 v14, 10, v14\nv_lshlrev_b32 v13, 2, v13\nv_mad_u32_u24 v13, v14, 12, v13")
        e("s_waitcnt vmcnt(2)")
        for i in range(5):
            e(f"v_lshlrev_b32 v{24+2*i}, 16, v{16+i}\nv_and_b32 v{25+2*i}, 0xffff0000, v{16+i}")
        e("v_add_f32 v34, v24, v25")
        for i in range(2, 10): e(f"v_add_f32 v34, v34, v{24+i}")
        s.wsum(34, 35)
        e(f"v_mul_f32 v34, {f2u(1/640)}, v34")
        for i in range(10): e(f"v_sub_f32 v{24+i}, v{24+i}, v34")
        e("v_mul_f32 v36, v24, v24")
        for i in range(1, 10): e(f"v_fmac_f32 v36, v{24+i}, v{24+i}")
        s.wsum(36, 35)
        e(f"v_mul_f32 v36, {f2u(1/640)}, v36")
        s.rbf(34); s.rbf(36)
        e(f"v_add_f32 v36, {f2u(1e-5)}, v36"); s.rbf(36)
        e("v_sqrt_f32 v36, v36"); s.rbf(36)
        e("v_rcp_f32 v36, v36\ns_waitcnt vmcnt(0)")
        e("v_lshlrev_b32 v21, 16, v21\nv_lshlrev_b32 v22, 16, v22\nv_sub_f32 v21, v21, v34\nv_sub_f32 v22, v22, v34")
        s.rbf(21); s.rbf(22)
        e("v_mul_f32 v21, v21, v36\nv_mul_f32 v22, v22, v36\nv_cvt_pk_bf16_f32 v21, v21, v21\nv_cvt_pk_bf16_f32 v22, v22, v22")
        e(f"ds_write_b32 v12, v21 offset:{L_XN}\nds_write_b32 v13, v22 offset:{L_XN}")
        if o["prew"]:
            e("s_waitcnt lgkmcnt(0)\nv_mov_b32 v47, s33")
            if o["prew"] & 1: e(f"global_store_dwordx4 v8, v[44:47], s[30:31] {o['stf2']}")
            if o["prew"] & 2: e("s_cmp_lt_u32 s5, 5\ns_cbranch_scc0 L_Hx\nglobal_store_dwordx4 v9, v[44:47], s[30:31] sc1")
        e("s_branch L_Hx")
        e("L_H1:")
        e("s_waitcnt vmcnt(0)\nglobal_load_dword v40, v11, s[8:9]")
        e("L_Hx:")
        s.tag()
        s.stamp(2)
        e("s_barrier")
        e(f"s_mul_i32 s36, s3, {X1G-X1Q}\ns_lshl_b32 s37, s4, 13\ns_add_u32 s36, s36, s37\ns_add_u32 s36, s36, {X1Q}\ns_lshl_b32 s37, s5, 10\ns_add_u32 s37, s37, s36\ns_add_u32 s36, s36, 0x1000")
        e("v_add_u32 v6, s37, v5\nv_add_u32 v7, s36, v5\nv_mov_b32 v47, s33\ns_lshl_b32 s36, s3, 11\nv_lshlrev_b32 v14, 3, v1\nv_add_u32 v12, s36, v14")
        e(f"s_mov_b32 s39, {SPIN}")
        e("s_barrier")
        e("s_mul_i32 s36, s3, s4\ns_cmp_ge_u32 s36, 27\ns_cbranch_scc1 L_H1end")
        for k in range(4): e(f"ds_read_b64 v[{16+2*k}:{17+2*k}], v12 offset:{L_P1+512*k}")
        e("s_waitcnt lgkmcnt(0)")
        e("v_add_f32 v16, v16, v18\nv_add_f32 v17, v17, v19\nv_add_f32 v20, v20, v22\nv_add_f32 v21, v21, v23\nv_add_f32 v44, v16, v20\nv_add_f32 v45, v17, v21")
        if o["dual"] & 4: e("global_store_dwordx4 v6, v[44:47], s[30:31]")
        if not o["nost"]: e(f"global_store_dwordx4 v6, v[44:47], s[30:31] {o['stf1']}")
        if o["dual"] & 1: e("global_store_dwordx4 v6, v[44:47], s[30:31]")
        s.stamp(3)
        e("s_cmp_lt_u32 s5, 5\ns_cselect_b32 s36, s3, 0\ns_cmp_eq_u32 s36, 1\ns_cbranch_scc1 L_H1end")
        if o["ackwait"]: e("s_waitcnt vmcnt(0)")
        s.stamp(4)
        e("L_poll1:")
        for p in range(o["ng"]): e(f"global_load_dwordx4 v[{48+4*p}:{51+4*p}], v7, s[30:31] offset:{(p-4)*1024} sc1")
        if o["ng"] < 8: e("s_branch L_got1")
        e("s_sub_u32 s39, s39, 1\ns_cbranch_scc1 L_got1")
        e("s_waitcnt vmcnt(0)")
        e("v_min3_u32 v13, v51, v55, v59\nv_max3_u32 v15, v51, v55, v59\nv_min3_u32 v13, v13, v63, v67\nv_max3_u32 v15, v15, v63, v67")
        e("v_min3_u32 v13, v13, v71, v75\nv_max3_u32 v15, v15, v71, v75\nv_min3_u32 v13, v13, v79, v47\nv_max3_u32 v15, v15, v79, v47")
        e("v_cmp_ne_u32 vcc, v13, v15\ns_cbranch_vccnz L_poll1")
        e("L_got1:\ns_waitcnt vmcnt(0)")
        s.stamp(5)
        for p in range(1, 8): e(f"v_add_f32 v48, v48, v{48+4*p}\nv_add_f32 v49, v49, v{49+4*p}")
        e("v_cvt_pk_bf16_f32 v48, v48, v49")
        e("s_cmp_eq_u32 s3, 0\ns_cbranch_scc1 L_H0b")
        e("v_mov_b32 v49, v48\nv_permlane32_swap_b32 v48, v49")
        e("v_lshlrev_b32 v50, 16, v48\nv_and_b32 v51, 0xffff0000, v48\nv_lshlrev_b32 v54, 16, v49\nv_and_b32 v55, 0xffff0000, v49")
        e(f"v_mul_f32 v52, {f2u(-1.4426950408889634)}, v50\nv_mul_f32 v53, {f2u(-1.4426950408889634)}, v51\nv_exp_f32 v52, v52\nv_exp_f32 v53, v53")
        e("v_add_f32 v52, 1.0, v52\nv_add_f32 v53, 1.0, v53\nv_rcp_f32 v52, v52\nv_rcp_f32 v53, v53")
        s.rbf(52); s.rbf(53)
        e("v_mul_f32 v52, v52, v54\nv_mul_f32 v53, v53, v55\nv_cvt_pk_bf16_f32 v52, v52, v52\nv_cvt_pk_bf16_f32 v53, v53, v53\nv_and_b32 v14, 0xff, v14")
        e(f"ds_write_b64 v14, v[52:53] offset:{L_H}\ns_waitcnt lgkmcnt(0)")
        s.stamp(6)
        e("L_H1end:\ns_cmp_lt_u32 s50, 40\ns_cbranch_scc1 L_RED")
        if st: e("s_barrier\ns_barrier\ns_barrier\ns_barrier" + ("\ns_barrier" if o["nb"] >= 0 else ""))
        s.end()
        s.pad(False)
        e("L_H0b:")
        e(f"v_lshlrev_b32 v12, 2, v1\nv_mov_b32 v13, 0\nds_write_b32 v12, v48 offset:{L_Q}")
        e("s_waitcnt lgkmcnt(0)\ns_barrier")
        e("s_barrier")
        for k in range(4): e(f"ds_read_b128 v[{16+4*k}:{19+4*k}], v13 offset:{L_ML+16*k}")
        e("s_waitcnt lgkmcnt(0)")
        s.stamp(6)
        e("v_max3_f32 v12, v16, v18, v20\nv_max3_f32 v12, v12, v22, v24\nv_max3_f32 v12, v12, v26, v28\nv_max_f32 v12, v12, v30")
        for k in range(8): e(f"v_sub_f32 v{16+2*k}, v{16+2*k}, v12")
        for k in range(8): e(f"v_mul_f32 v{16+2*k}, {LOG2E}, v{16+2*k}")
        for k in range(8): e(f"v_exp_f32 v{16+2*k}, v{16+2*k}")
        e("v_mul_f32 v15, v16, v17")
        for k in range(1, 8): e(f"v_fmac_f32 v15, v{16+2*k}, v{17+2*k}")
        e(f"v_log_f32 v46, v15\nv_rcp_f32 v15, v15\nv_fmac_f32 v46, {LOG2E}, v12")
        for k in range(8): e(f"v_mul_f32 v{16+2*k}, v{16+2*k}, v15")
        s.stamp(7)
        if st: e("s_waitcnt lgkmcnt(0)")
        e("s_barrier")
        for k in range(8): e(f"ds_read_b64 v[{48+2*k}:{49+2*k}], v14 offset:{L_OW+512*k}")
        for k in range(8):
            e(f"s_waitcnt lgkmcnt({7-k})")
            op = "v_mul_f32" if k == 0 else "v_fmac_f32"
            e(f"{op} v44, v{16+2*k}, v{48+2*k}\n{op} v45, v{16+2*k}, v{49+2*k}")
        if o["dual"] & 8: e("global_store_dwordx4 v8, v[44:47], s[30:31]")
        e(f"global_store_dwordx4 v8, v[44:47], s[30:31] {o['stf2']}")
        if o["dual"] & 2: e("global_store_dwordx4 v8, v[44:47], s[30:31]")
        if o["nb"] >= 0: e("s_barrier")
        s.stamp(8)
        if st: e("s_waitcnt lgkmcnt(0)")
        e("s_barrier")
        for k in range(8): e(f"ds_read_b64 v[{48+2*k}:{49+2*k}], v14 offset:{L_OUT+512*k}")
        for k in (1, 2, 3, 5, 6, 7):
            e(f"s_waitcnt lgkmcnt({7-k})")
            d = 48 if k < 4 else 56
            e(f"v_add_f32 v{d}, v{d}, v{48+2*k}\nv_add_f32 v{d+1}, v{d+1}, v{49+2*k}")
        e("s_cmp_lt_u32 s5, 5\ns_cbranch_scc0 L_pubB\nv_add_f32 v44, v48, v56\nv_add_f32 v45, v49, v57")
        e(f"global_store_dwordx4 v9, v[44:47], s[30:31] {o['stf']}")
        s.stamp(10)
        s.end()
        e("L_pubB:\ns_cmp_ge_u32 s4, 27\ns_cbranch_scc1 L_pubBend\nv_mov_b32 v51, v47\nv_mov_b32 v59, v47")
        e("global_store_dwordx4 v9, v[48:51], s[30:31] sc1\ns_cmp_eq_u32 s5, 7\ns_cbranch_scc1 L_pubBend\nglobal_store_dwordx4 v10, v[56:59], s[30:31] sc1")
        e("L_pubBend:")
        s.stamp(9)
        s.end()

        def red(lbl, off, nprod, ldf):
            e(f"s_mov_b32 s39, {SPIN}\nL_poll{lbl}:")
            for k in range(4): e(f"global_load_dwordx4 v[{48+4*k}:{51+4*k}], v{off}, s[30:31] offset:{1024*k} {ldf}")
            e(f"s_sub_u32 s39, s39, 1\ns_cbranch_scc1 L_got{lbl}\ns_waitcnt vmcnt(0)")
            if nprod < 32: e("v_cndmask_b32 v63, v47, v63, s[52:53]")
            e("v_min3_u32 v12, v51, v55, v47\nv_max3_u32 v13, v51, v55, v47\nv_min3_u32 v12, v12, v59, v63\nv_max3_u32 v13, v13, v59, v63")
            e(f"v_cmp_ne_u32 vcc, v12, v13\ns_cbranch_vccnz L_poll{lbl}")
            e(f"L_got{lbl}:\ns_waitcnt vmcnt(0)")
            if nprod == 32: s.stamp(11)
            if nprod < 32: e("v_cndmask_b32 v60, 0, v60, s[52:53]\nv_cndmask_b32 v61, 0, v61, s[52:53]")
            e("v_add_f32 v48, v48, v52\nv_add_f32 v49, v49, v53\nv_add_f32 v56, v56, v60\nv_add_f32 v57, v57, v61\nv_add_f32 v48, v48, v56\nv_add_f32 v49, v49, v57")
            e(f"v_add_f32_dpp v48, v48, v48 row_ror:8 {DPP}\nv_add_f32_dpp v49, v49, v49 row_ror:8 {DPP}")
            e("v_permlane16_swap_b32 v48, v49\nv_add_f32 v48, v48, v49")
            e("v_mov_b32 v49, v48\nv_permlane32_swap_b32 v48, v49\nv_add_f32 v48, v48, v49")
            e("v_cvt_pk_bf16_f32 v48, v48, v48\nv_and_b32 v48, 0xffff0000, v48")
        e("L_RED:")
        e(f"s_lshl_b32 s36, s50, 12\ns_add_u32 s36, s36, {X3}\nv_add_u32 v4, s36, v5\nv_add_u32 v6, {X3B-X3}, v4")
        e("s_mov_b32 s52, 0xffffff\ns_mov_b32 s53, 0\nv_and_b32 v12, 16, v1\nv_sub_u32 v12, 16, v12\ns_waitcnt vmcnt(0)\nv_lshlrev_b32 v40, v12, v40\nv_and_b32 v40, 0xffff0000, v40")
        e("v_bfe_u32 v12, v1, 4, 1\nv_lshl_add_u32 v11, v12, 1, v11")
        e("s_barrier\ns_barrier\ns_barrier\ns_barrier" + ("\ns_barrier" if o["nb"] >= 0 else ""))
        red("3b", 6, 27, "sc1")
        e("v_mov_b32 v41, v48")
        red("3", 4, 32, o["ldf3"])
        e("v_add_f32 v48, v48, v40\nv_cvt_pk_bf16_f32 v48, v48, v48\nv_and_b32 v48, 0xffff0000, v48\nv_add_f32 v48, v48, v41\nv_cvt_pk_bf16_f32 v48, v48, v48")
        e(f"s_mov_b64 exec, 0xff00ff\nglobal_store_short v11, v48, s[26:27] {o['outf']}")
        e("s_cmp_eq_u32 s50, 0\ns_cbranch_scc0 L_Rend")
        e("s_mov_b64 exec, 1\nv_mov_b32 v12, 0\nglobal_store_dword v12, v47, s[30:31] sc1")
        e("L_Rend:")
        if o.get("pad"):
            e(f"L_padw:\ns_memrealtime s[92:93]\ns_waitcnt lgkmcnt(0)\ns_sub_u32 s92, s92, s90\ns_cmp_lt_u32 s92, {o['pad']}\ns_cbranch_scc1 L_padw")
        if st:
            e("s_mov_b64 exec, -1\ns_waitcnt vmcnt(0)")
            s.stamp(12)
            e("L_stamp:\ns_waitcnt lgkmcnt(0)\ns_sleep 127")
            e("s_getreg_b32 s56, hwreg(HW_REG_HW_ID, 0, 16)\ns_getreg_b32 s57, hwreg(HW_REG_XCC_ID, 0, 4)\ns_lshl_b32 s57, s57, 16\ns_or_b32 s56, s56, s57")
            e("v_mov_b32 v9, 0\nv_writelane_b32 v9, s56, 0")
            for i in range(14): e(f"v_writelane_b32 v9, s{60+2*i}, {i+1}")
            e(f"s_mul_i32 s56, s2, 10\ns_add_u32 s56, s56, s3\ns_lshl_b32 s56, s56, 6\ns_add_u32 s56, s56, 0x4000000")
            e("v_lshlrev_b32 v10, 2, v1\nv_add_u32 v10, s56, v10\ns_mov_b64 exec, 0xffff\nglobal_store_dword v10, v9, s[30:31]")
        e("L_exit:\ns_endpgm")
        e(f""".section .rodata,"a"
.p2align 6
.amdhsa_kernel {KN}
  .amdhsa_next_free_vgpr {o['vg']}
  .amdhsa_next_free_sgpr 96
  .amdhsa_accum_offset {o['vg']}
  .amdhsa_group_segment_fixed_size 0
  .amdhsa_kernarg_size 96
  .amdhsa_user_sgpr_count 2
  .amdhsa_user_sgpr_kernarg_segment_ptr 1
  .amdhsa_system_sgpr_workgroup_id_x 1
  .amdhsa_float_denorm_mode_32 3
.end_amdhsa_kernel""")
        t = "\n".join(s.L)
        t = t.replace("WARMJUMP", "\n".join(f"s_cmp_eq_u32 s7, {k}\ns_cbranch_scc1 L_pad{k}" for k in range(s.npad)))
        return hz.fix(t) + "\n"

if __name__ == "__main__":
    out = sys.argv[1]; o = {}
    for a in sys.argv[2:]:
        k, v = a.split("=")
        o[k] = int(v) if v.lstrip("-").isdigit() else v.replace("+", " ")
    open(out, "w").write(G4(**o).build())
```

```python
import sys, struct
import hz
from gen import G, KN, f2u, LOG2E, DPP, X1Q, X1G, X2, X3, SPIN
L_XN, L_ML, L_Q, L_H, L_P1, L_OW, L_OUT = 0, 512, 576, 832, 1088, 1088 + 4096, 1088 + 8192
LDS_USED = L_OUT + 4096
RW, RK, RV, RO = 48, 68, 100, 132
MF = "v_mfma_f32_16x16x32_bf16"

X3B = X3 + 0x28000

class G5(G):
    def __init__(s, **o):
        d = dict(nt="nt", stamps=False, lds=LDS_USED, ackwait=1, W=3, kq=16, kx=3, WO=3, vg=152, prio=0, nk0=0, prew=0, fast=1, tries=3, late=1, joint=1, wb=0, pollat=0,
                 warm=0, outf="", sprio=0, ng=8, nost=0, nb=-1, ne=0, stf1='sc1', stf2='sc1', dual=0, ldf='sc1', ldf3='sc1', stf='sc1', W0=4)
        d.update(o); super().__init__(**d); s.npad = 0; s.tail = []
    def pad(s, inline):
        if not s.o["warm"]: return
        k = s.npad; s.npad += 1
        if inline: s.e(f"s_branch L_over{k}")
        s.e(f"L_pad{k}:\ns_branch L_warmed")
        if inline: s.e(f"L_over{k}:")
    def build(s):
        e = s.e; o = s.o; nt = o["nt"]; W = o["W"]; WO = o["WO"]; nk0 = o["nk0"]; st = o["stamps"]; W0 = o["W0"] or W
        e(f"; @launch grid=(256,1,1) block=(640,1,1) lds={o['lds']}")
        e('.amdgcn_target "amdgcn-amd-amdhsa--gfx950"\n.text')
        e(f".globl {KN}\n.p2align 8\n.type {KN},@function\n{KN}:")
        s.stamp(0)
        if o.get("pad"): e("s_memrealtime s[90:91]")
        e("s_load_dwordx16 s[8:23], s[0:1], 0\ns_load_dwordx8 s[24:31], s[0:1], 64")
        e("v_readfirstlane_b32 s3, v0\ns_lshr_b32 s5, s2, 5\ns_cmp_ge_u32 s5, 8\ns_cbranch_scc1 L_exit")
        e("s_lshr_b32 s3, s3, 6\nv_and_b32 v1, 63, v0\ns_and_b32 s4, s2, 31\ns_sub_u32 s7, s3, 2\ns_cbranch_scc0 L_S")
        e("s_mul_i32 s6, s5, 80\nv_lshlrev_b32 v5, 4, v1\nv_lshlrev_b32 v6, 2, v1\nv_add_lshl_u32 v7, v1, s6, 1\ns_waitcnt lgkmcnt(0)")
        e("global_load_dwordx4 v[16:19], v5, s[8:9]\nglobal_load_dword v20, v6, s[8:9] offset:1024")
        e("global_load_ushort v21, v7, s[8:9]\nglobal_load_ushort v22, v7, s[8:9] offset:32")
        e("s_branch L_H")
        e("L_S:")
        e("s_movk_i32 s34, 0x2000\ns_cmp_ge_u32 s7, 4\ns_cselect_b32 s36, 3, 4\ns_cmovk_i32 s34, 0xd80\ns_cselect_b32 s38, 27, 32")
        e("v_bfe_u32 v14, v0, s36, 4\nv_bfe_u32 v6, v0, 0, s36\ns_mul_i32 s35, s34, 5\nv_lshl_add_u32 v4, s5, 4, v14\ns_lshl_b32 s37, s4, s36")
        e("v_mul_u32_u24 v4, s35, v4\nv_add_u32 v6, s37, v6\nv_lshl_add_u32 v4, v6, 4, v4")
        e("s_cmp_ge_u32 s7, 6\ns_waitcnt lgkmcnt(0)\ns_cselect_b64 s[18:19], s[22:23], s[20:21]\ns_cmp_ge_u32 s7, 4\ns_cselect_b64 s[18:19], s[18:19], s[14:15]")
        e("s_cmp_ge_u32 s4, s38\ns_cbranch_scc1 L_now1")
        ko = [t * 1024 for t in range(8)]; vo = [(t // 4) * 4096 + (t % 4) * 256 for t in range(8)]
        KL = [(f"v_xor_b32 v5, {ko[t]^ko[t-1]}, v5\n" if t else "") + f"global_load_dwordx4 v[{RK+4*t}:{RK+3+4*t}], v5, s[10:11] {nt}" for t in range(8)]
        VL = [(f"v_xor_b32 v6, {vo[t]^vo[t-1]}, v6\n" if t else "") + f"global_load_dwordx4 v[{RV+4*t}:{RV+3+4*t}], v6, s[12:13] {nt}" for t in range(8)]
        WL = [("v_add_u32 v4, s34, v4\n" if u else "") + f"global_load_dwordx4 v[{RW+4*u}:{RW+3+4*u}], v4, s[18:19] {nt}" for u in range(5)]
        OL = [f"global_load_dwordx4 v[{RO+4*u}:{RO+3+4*u}], v7, s[18:19] offset:{u*1280} {nt}" for u in range(4)]
        ne = o["ne"]; nb = o["nb"]
        loads = KL[:nk0] + WL + KL[nk0:] + OL[:ne] + VL + OL[ne:]
        iV0 = 13 + ne
        iW4 = nk0 + 4
        issued = [0]
        def win(k): return W0 if k <= iW4 else (W if k < iV0 + 8 else WO)
        def issue_to(k, pace=True):
            while issued[0] <= k:
                i = issued[0]
                pre, _, ld = loads[i].rpartition("\n")
                if pre: e(pre)
                if pace and i >= win(i): e(f"s_waitcnt vmcnt({win(i)-1})")
                e(ld); issued[0] += 1
        def wait_for(k):
            assert k < issued[0]
            e(f"s_waitcnt vmcnt({issued[0]-1-k})")
        issue_to(W0 - 1)
        s.stamp(1)
        issue_to(iW4)
        e("L_now1:")
        if st:
            for i in range(2, 14): e(f"s_mov_b32 s{60+2*i}, 0")
        e("s_load_dword s33, s[30:31], 0\ns_mov_b32 s32, s4")
        e("s_xor_b32 s37, s7, s5\ns_xor_b32 s37, s37, s4\ns_and_b32 s37, s37, 7\ns_and_b32 s38, s37, 3\ns_lshl2_add_u32 s37, s37, s38")
        e("s_lshl2_add_u32 s36, s4, 3\ns_lshl3_add_u32 s36, s36, s5\ns_lshl3_add_u32 s36, s36, s7\ns_lshl_b32 s36, s36, 5\ns_or_b32 s36, s36, s37\ns_lshl_b32 s36, s36, 8")
        e("v_and_b32 v3, 15, v0\nv_and_b32 v5, 12, v0\nv_lshrrev_b32 v2, 4, v1\nv_and_b32 v6, 3, v0\nv_lshl_add_u32 v47, v2, 2, v6\nv_lshlrev_b32 v47, 4, v47\nv_lshl_add_u32 v5, v5, 6, v47\nv_xor_b32 v5, s36, v5")
        e("v_lshlrev_b32 v6, 10, v2\nv_lshl_add_u32 v6, v3, 4, v6\nv_xor_b32 v6, s36, v6")
        issue_to(iW4 + 1)
        s.masks()
        issue_to(iW4 + 1)
        e("s_cmp_ge_u32 s7, 4\ns_cselect_b32 s36, 9, 8\ns_lshl_b32 s37, s7, 9\ns_and_b32 s38, s7, 1\ns_lshl_b32 s38, s38, 10\ns_and_b32 s39, s7, 2\ns_lshl_b32 s39, s39, 7\ns_add_u32 s38, s38, s39\ns_add_u32 s38, s38, 0x800")
        e("s_cmp_ge_u32 s7, 4\ns_cselect_b32 s37, s38, s37")
        e("v_lshrrev_b32 v12, 3, v3\nv_lshlrev_b32 v12, s36, v12\nv_and_b32 v13, 7, v3\nv_lshl_add_u32 v12, v13, 5, v12\nv_and_b32 v13, 1, v2\nv_lshl_add_u32 v12, v13, 4, v12\nv_add_u32 v13, s37, v12")
        e("v_lshlrev_b32 v14, 5, v14\ns_mov_b32 s54, 0x00ff00ff\ns_mov_b32 s55, 0xff00ff00")
        issue_to(nk0 + o["kx"] + W)
        e("s_barrier")
        e(f"ds_read_b128 v[40:43], v14 offset:{L_XN}\nds_read_b32 v44, v14 offset:{L_XN+16}\ns_waitcnt lgkmcnt(0)")
        for u in range(5):
            for k in range(4): e(f"v_and_b32 v{16+4*u+k}, v{40+u}, v{8+k}")
        issue_to(iW4 + W)
        wait_for(iW4)
        s.stamp(2)
        for u in range(5):
            e(f"{MF} v[40:43], v[{16+4*u}:{19+4*u}], v[{RW+4*u}:{RW+3+4*u}], {'0' if u == 0 else 'v[40:43]'}")
        e("s_mul_i32 s33, s33, 1664525\ns_add_u32 s33, s33, 1013904223\ns_mov_b64 exec, s[54:55]")
        for t in range(4):
            e(f"s_mov_b32 s{40+2*t}, {0x000f000f << (4*t)}\ns_mov_b32 s{41+2*t}, s{40+2*t}")
        e(f"ds_write_b128 v13, v[40:43] offset:{L_P1}\ns_mov_b64 exec, -1\ns_waitcnt lgkmcnt(0)\ns_barrier")
        issue_to(iW4 + W + 1)
        for c in range(1, 4):
            e(f"s_mov_b32 s{46+2*c}, {0x11111111 << c}\ns_mov_b32 s{47+2*c}, s{46+2*c}")
        e("s_lshl3_add_u32 s36, s4, s7\ns_and_b32 s37, s7, 3\ns_lshl2_add_u32 s37, s4, s37\ns_lshr_b32 s38, s7, 2\ns_lshl1_add_u32 s38, s5, s38\ns_sub_u32 s38, s38, 10")
        e("s_cmp_ge_u32 s4, 27\ns_cselect_b32 s38, 5, s38")
        e("s_cmp_lt_u32 s5, 5\ns_cselect_b64 s[18:19], s[16:17], s[24:25]\ns_cselect_b32 s36, s36, s37\ns_cselect_b32 s38, s5, s38")
        e(f"s_mul_i32 s36, s36, {16*1280}\ns_lshl_b32 s37, s38, 8\ns_add_u32 s36, s36, s37")
        e(f"v_mul_u32_u24 v7, {4*1280}, v2\nv_lshl_add_u32 v7, v3, 4, v7\nv_add_u32 v7, s36, v7")
        e("s_cmp_lt_u32 s38, 5\ns_cselect_b32 s36, -1, 0\nv_and_b32 v7, s36, v7")
        issue_to(iW4 + W + 2)
        e("s_lshl_b32 s36, s7, 9\nv_lshlrev_b32 v4, 5, v3\nv_lshl_add_u32 v4, v2, 4, v4\nv_add_u32 v4, s36, v4")
        e("s_lshl_b32 s36, s7, 3\nv_mov_b32 v12, s36\ns_and_b32 s36, s7, 3\ns_lshl_b32 s36, s36, 6\nv_lshl_add_u32 v14, v2, 4, s36")
        e(f"s_lshl_b32 s36, s4, 13\ns_lshl_b32 s37, s7, 7\ns_add_u32 s36, s36, s37\ns_add_u32 s36, s36, {X2}")
        e("v_lshrrev_b32 v13, 1, v3\nv_lshlrev_b32 v13, 10, v13\nv_lshl_add_u32 v13, v2, 5, v13\nv_and_b32 v45, 1, v3\nv_lshl_add_u32 v13, v45, 4, v13\nv_add_u32 v13, s36, v13")
        s.pad(True)
        kq = o["kq"]; nxt = [kq]
        def tick():
            nxt[0] += 1
            if nxt[0] <= (iV0 + 7 + WO - 1 if nb < 0 else iV0 + 7) and nxt[0] <= 24: issue_to(nxt[0])
        issue_to(kq)
        s.stamp(3)
        e("s_barrier")
        s.stamp(4)
        e(f"ds_read_b128 v[32:35], v47 offset:{L_Q}" + ("" if o["late"] else f"\nds_read_b128 v[{RW}:{RW+3}], v14 offset:{L_H}") + "\ns_waitcnt lgkmcnt(0)")
        for t in range(4):
            for k in range(4): e(f"v_cndmask_b32 v{16+4*t+k}, 0, v{32+k}, s[{40+2*t}:{41+2*t}]")
        wait_for(12)
        for t in range(4):
            for Gp in range(2):
                d = 36 + 4 * Gp; b = RK + 4 * (4 * Gp + t)
                e(f"{MF} v[{d}:{d+3}], v[{16+4*t}:{19+4*t}], v[{b}:{b+3}], {'0' if t == 0 else f'v[{d}:{d+3}]'}")
        tick()
        for c in range(1, 4):
            e(f"v_cndmask_b32 v36, v36, v{36+c}, s[{46+2*c}:{47+2*c}]\nv_cndmask_b32 v40, v40, v{40+c}, s[{46+2*c}:{47+2*c}]")
        for qp in ("[1,0,3,2]", "[2,3,0,1]"):
            e(f"v_add_f32_dpp v36, v36, v36 quad_perm:{qp} {DPP}\nv_add_f32_dpp v40, v40, v40 quad_perm:{qp} {DPP}")
        e("v_cvt_pk_bf16_f32 v37, v36, v40\nv_lshlrev_b32 v36, 16, v37\nv_and_b32 v40, 0xffff0000, v37")
        e(f"v_mul_f32 v36, {f2u(128**-0.5)}, v36\nv_mul_f32 v40, {f2u(128**-0.5)}, v40")
        e("v_cvt_pk_bf16_f32 v37, v36, v40\nv_lshlrev_b32 v36, 16, v37\nv_and_b32 v40, 0xffff0000, v37")
        tick()
        e(f"v_max_f32 v44, v36, v40\nv_max_f32_dpp v44, v44, v44 row_ror:4 {DPP}\nv_max_f32_dpp v44, v44, v44 row_ror:8 {DPP}")
        s.xrows("v_max_f32", 44, 37)
        e(f"v_sub_f32 v36, v36, v44\nv_sub_f32 v40, v40, v44\nv_mul_f32 v36, {LOG2E}, v36\nv_mul_f32 v40, {LOG2E}, v40\nv_exp_f32 v36, v36\nv_exp_f32 v40, v40")
        e(f"v_add_f32 v45, v36, v40\nv_cvt_pk_bf16_f32 v38, v36, v36\nv_cvt_pk_bf16_f32 v39, v40, v40")
        e(f"v_add_f32_dpp v45, v45, v45 row_ror:4 {DPP}\nv_add_f32_dpp v45, v45, v45 row_ror:8 {DPP}")
        s.xrows("v_add_f32", 45, 37)
        e(f"ds_write_b64 v12, v[44:45] offset:{L_ML}")
        tick()
        if not o["late"]: e("s_waitcnt lgkmcnt(0)\ns_barrier")
        for t in range(8):
            for k in range(4): e(f"v_and_b32_dpp v{RK+4*t+k}, v{38+t//4}, v{8+k} row_newbcast:{4*(t%4)} {DPP}")
            if t == 3:
                tick()
                if o["late"]:
                    issue_to(iV0 + 7)
                    e("s_waitcnt lgkmcnt(0)\ns_barrier")
        e(f"v_mov_b32 v47, s33\ns_mov_b32 s39, {SPIN}")
        s.stamp(5)
        if o["sprio"]: e(f"s_setprio {o['sprio']}")
        for t in range(8):
            k = iV0 + t
            tgt = max(i for i in range(25) if i - win(i) <= k)
            if nb >= 0: tgt = min(tgt, iV0 + 7)
            issue_to(tgt)
            if nb >= 0 and issued[0] == iV0 + 8: issue_to(iV0 + 7 + nb, pace=False)
            wait_for(k)
            e(f"{MF} v[40:43], v[{RK+4*t}:{RK+3+4*t}], v[{RV+4*t}:{RV+3+4*t}], {'0' if t == 0 else 'v[40:43]'}")
        s.stamp(6)
        e("s_mov_b32 exec_hi, 0")
        e(f"ds_write_b128 v4, v[40:43] offset:{L_OW}\ns_mov_b32 exec_hi, -1\ns_waitcnt lgkmcnt(0)\ns_barrier")
        if nb >= 0: e("s_barrier")
        issue_to(24, pace=nb < 0)
        e("s_cmp_lt_u32 s5, 5\ns_cbranch_scc1 L_attn")
        if o["late"]: e(f"s_barrier\nds_read_b128 v[{RW}:{RW+3}], v14 offset:{L_H}\ns_waitcnt lgkmcnt(0)")
        for u in range(4):
            for k in range(4): e(f"v_and_b32 v{16+4*u+k}, v{RW+u}, v{8+k}")
        for u in range(3):
            e(f"s_waitcnt vmcnt({min(3-u, 4-ne)})\n{MF} v[36:39], v[{16+4*u}:{19+4*u}], v[{RO+4*u}:{RO+3+4*u}], {'0' if u == 0 else 'v[36:39]'}")
        e("s_waitcnt vmcnt(0)")
        s.stamp(7)
        e("s_branch L_lastmf")
        e("L_attn:")
        e(f"s_waitcnt vmcnt({o['pollat']})")
        s.stamp(7)
        e("L_poll2:")
        e(f"global_load_dwordx4 v[32:35], v13, s[30:31] {o['ldf']}")
        e("s_sub_u32 s39, s39, 1\ns_cbranch_scc1 L_got2\ns_waitcnt vmcnt(0)")
        e("v_cmp_ne_u32 vcc, v35, v47\ns_cbranch_vccnz L_poll2")
        e("L_got2:\ns_waitcnt vmcnt(0)")
        s.stamp(8)
        steps = ["quad_perm:[2,3,0,1]", "row_ror:4", "row_ror:8"]
        e(f"v_max_f32_dpp v12, v34, v34 {steps[0]} {DPP}\nv_max_f32_dpp v12, v12, v12 {steps[1]} {DPP}\nv_max_f32_dpp v12, v12, v12 {steps[2]} {DPP}")
        e("v_sub_f32 v34, v34, v12\nv_exp_f32 v34, v34\nv_mul_f32 v32, v32, v34\nv_mul_f32 v33, v33, v34")
        for stp in steps:
            for v in (34, 32, 33): e(f"v_add_f32_dpp v{v}, v{v}, v{v} {stp} {DPP}")
        e("v_rcp_f32 v34, v34\nv_mul_f32 v32, v32, v34\nv_mul_f32 v33, v33, v34\nv_cvt_pk_bf16_f32 v32, v32, v32\nv_cvt_pk_bf16_f32 v33, v33, v33")
        for u in range(4):
            for k in range(4): e(f"v_and_b32_dpp v{16+4*u+k}, v{32+u%2}, v{8+k} row_newbcast:{u//2} {DPP}")
            if u >= 1: e(f"{MF} v[36:39], v[{12+4*u}:{15+4*u}], v[{RO+4*u-4}:{RO+4*u-1}], {'0' if u == 1 else 'v[36:39]'}")
        e("s_nop 0\nL_lastmf:")
        e(f"{MF} v[36:39], v[28:31], v[{RO+12}:{RO+15}], v[36:39]")
        e("s_mov_b32 exec_hi, 0")
        e(f"ds_write_b128 v4, v[36:39] offset:{L_OUT}\ns_waitcnt lgkmcnt(0)\ns_barrier")
        if st: e("s_mov_b64 exec, -1")
        s.stamp(9)
        s.end()

        e("L_H:")
        if st:
            for i in range(1, 14): e(f"s_mov_b32 s{60+2*i}, 0")
        if o["prio"]: e(f"s_setprio {o['prio']}")
        e("s_load_dword s33, s[30:31], 0\ns_mov_b32 s32, s4")
        e(f"s_lshl_b32 s36, s4, 13\ns_lshl_b32 s37, s5, 10\ns_add_u32 s36, s36, s37\ns_add_u32 s36, s36, {X2}\nv_add_u32 v8, s36, v5")
        e("s_lshl_b32 s36, s5, 1\ns_sub_u32 s36, s36, 5\ns_cmp_lt_u32 s5, 5\ns_cselect_b32 s36, s5, s36")
        e(f"s_lshl_b32 s36, s36, 15\ns_lshl_b32 s37, s4, 7\ns_add_u32 s36, s36, s37\ns_add_u32 s36, s36, {X3}")
        e("v_lshrrev_b32 v9, 3, v1\nv_lshlrev_b32 v9, 12, v9\nv_and_b32 v12, 7, v1\nv_lshl_add_u32 v9, v12, 4, v9\nv_add_u32 v9, s36, v9\nv_add_u32 v10, 0x8000, v9")
        e("s_sub_u32 s50, s2, 224\ns_add_u32 s51, s4, 8\ns_cmp_lt_u32 s2, 224\ns_cselect_b32 s50, s51, s50\ns_cmp_lt_u32 s2, 216\ns_cselect_b32 s50, 64, s50")
        e("s_min_u32 s36, s50, 39\ns_lshl_b32 s36, s36, 5\nv_and_b32 v11, 7, v1\nv_lshl_add_u32 v11, v11, 2, s36")
        e("s_cmp_eq_u32 s3, 0\ns_cbranch_scc0 L_H1")
        s.stamp(1)
        e("v_mul_u32_u24 v12, 205, v1\nv_lshrrev_b32 v12, 10, v12\nv_mad_u32_u24 v12, v12, 12, v6")
        e("v_add_u32 v13, 16, v1\nv_mul_u32_u24 v14, 205, v13\nv_lshrrev_b32 v14, 10, v14\nv_lshlrev_b32 v13, 2, v13\nv_mad_u32_u24 v13, v14, 12, v13")
        e("s_waitcnt vmcnt(2)")
        for i in range(5):
            e(f"v_lshlrev_b32 v{24+2*i}, 16, v{16+i}\nv_and_b32 v{25+2*i}, 0xffff0000, v{16+i}")
        e("v_add_f32 v34, v24, v25")
        for i in range(2, 10): e(f"v_add_f32 v34, v34, v{24+i}")
        s.wsum(34, 35)
        e(f"v_mul_f32 v34, {f2u(1/640)}, v34")
        for i in range(10): e(f"v_sub_f32 v{24+i}, v{24+i}, v34")
        e("v_mul_f32 v36, v24, v24")
        for i in range(1, 10): e(f"v_fmac_f32 v36, v{24+i}, v{24+i}")
        s.wsum(36, 35)
        e(f"v_mul_f32 v36, {f2u(1/640)}, v36")
        s.rbf(34); s.rbf(36)
        e(f"v_add_f32 v36, {f2u(1e-5)}, v36"); s.rbf(36)
        e("v_sqrt_f32 v36, v36"); s.rbf(36)
        e("v_rcp_f32 v36, v36\ns_waitcnt vmcnt(0)")
        e("v_lshlrev_b32 v21, 16, v21\nv_lshlrev_b32 v22, 16, v22\nv_sub_f32 v21, v21, v34\nv_sub_f32 v22, v22, v34")
        s.rbf(21); s.rbf(22)
        e("v_mul_f32 v21, v21, v36\nv_mul_f32 v22, v22, v36\nv_cvt_pk_bf16_f32 v21, v21, v21\nv_cvt_pk_bf16_f32 v22, v22, v22")
        e(f"ds_write_b32 v12, v21 offset:{L_XN}\nds_write_b32 v13, v22 offset:{L_XN}")
        if o["prew"]:
            e("s_waitcnt lgkmcnt(0)\nv_mov_b32 v47, s33")
            if o["prew"] & 1: e(f"global_store_dwordx4 v8, v[44:47], s[30:31] {o['stf2']}")
            if o["prew"] & 2: e("s_cmp_lt_u32 s5, 5\ns_cbranch_scc0 L_Hx\nglobal_store_dwordx4 v9, v[44:47], s[30:31] sc1")
        e("s_branch L_Hx")
        e("L_H1:")
        e("s_waitcnt vmcnt(0)\nglobal_load_dword v40, v11, s[8:9]")
        e("L_Hx:")
        s.tag()
        s.stamp(2)
        e("s_barrier")
        e(f"s_mul_i32 s36, s3, {X1G-X1Q}\ns_lshl_b32 s37, s4, 13\ns_add_u32 s36, s36, s37\ns_add_u32 s36, s36, {X1Q}\ns_lshl_b32 s37, s5, 10\ns_add_u32 s37, s37, s36\ns_add_u32 s36, s36, 0x1000")
        e(f"v_add_u32 v6, s37, v5\nv_add_u32 v7, s36, v5\nv_mov_b32 v47, s33\nv_lshlrev_b32 v14, 3, v1\nv_add_u32 v15, {X1G-X1Q}, v6")
        e(f"s_getreg_b32 s56, hwreg(HW_REG_XCC_ID, 0, 4)\nv_mov_b32 v35, s33\nv_mov_b32 v46, s56\ns_mov_b32 s39, {SPIN}\ns_mov_b32 s57, {o['tries'] if o['fast'] else 0}")
        e("s_cmp_eq_u32 s3, 0\ns_cbranch_scc0 L_H1b")
        e("s_barrier")
        for k in range(8): e(f"ds_read_b64 v[{16+2*k}:{17+2*k}], v14 offset:{L_P1+512*k}")
        e("s_waitcnt lgkmcnt(4)" if not st else "s_waitcnt lgkmcnt(0)")
        e("v_add_f32 v16, v16, v18\nv_add_f32 v17, v17, v19\nv_add_f32 v20, v20, v22\nv_add_f32 v21, v21, v23\nv_add_f32 v44, v16, v20\nv_add_f32 v45, v17, v21")
        fl = "" if o["fast"] else "sc1"
        e(f"global_store_dwordx4 v6, v[44:47], s[30:31] {fl}\ns_waitcnt lgkmcnt(0)")
        e("v_add_f32 v24, v24, v26\nv_add_f32 v25, v25, v27\nv_add_f32 v28, v28, v30\nv_add_f32 v29, v29, v31\nv_add_f32 v32, v24, v28\nv_add_f32 v33, v25, v29")
        e(f"s_cmp_ge_u32 s4, 27\ns_cbranch_scc1 L_nogu\nglobal_store_dwordx4 v15, v[32:35], s[30:31] {fl}\nL_nogu:")
        s.stamp(3)
        if o["ackwait"]: e("s_waitcnt vmcnt(0)")
        s.stamp(4)
        def gather(lbl, retry):
            e(f"L_poll{lbl}:")
            for p in range(8): e(f"global_load_dwordx4 v[{48+4*p}:{51+4*p}], v7, s[30:31] offset:{(p-4)*1024} sc1")
            if retry == "bar": e(f"s_barrier\nL_chk{lbl}:")
            e(f"s_sub_u32 s39, s39, 1\ns_cbranch_scc1 L_got{lbl}")
            e("s_waitcnt vmcnt(0)")
            e("v_min3_u32 v13, v51, v55, v59\nv_max3_u32 v12, v51, v55, v59\nv_min3_u32 v13, v13, v63, v67\nv_max3_u32 v12, v12, v63, v67")
            e("v_min3_u32 v13, v13, v71, v75\nv_max3_u32 v12, v12, v71, v75\nv_min3_u32 v13, v13, v79, v47\nv_max3_u32 v12, v12, v79, v47")
            e(f"v_cmp_ne_u32 vcc, v13, v12\ns_cbranch_vccnz L_{'retry' if retry else 'poll'}{lbl}")
            e(f"L_got{lbl}:\ns_waitcnt vmcnt(0)")
            s.stamp(5)
            for p in range(1, 8): e(f"v_add_f32 v48, v48, v{48+4*p}\nv_add_f32 v49, v49, v{49+4*p}")
            e("v_cvt_pk_bf16_f32 v48, v48, v49")
        gather("1", "pub")
        thru = "global_store_dwordx4 v6, v[44:47], s[30:31] sc1\ns_cmp_ge_u32 s4, 27\ns_cbranch_scc1 {0}\nglobal_store_dwordx4 v15, v[32:35], s[30:31] sc1\ns_branch {0}"
        s.tail.append("L_retry1:\ns_sub_u32 s57, s57, 1\ns_cmp_eq_u32 s57, 0\ns_cbranch_scc0 L_poll1\n" + thru.format("L_poll1"))
        e("s_branch L_H0b")
        e("L_H1b:")
        late = o["late"]
        e("s_barrier")
        e("s_cmp_lt_u32 s5, 5\ns_cselect_b32 s36, 32, s4\ns_cmp_ge_u32 s36, 27\ns_cbranch_scc1 L_H1end")
        if late:
            e("s_barrier\ns_barrier")
            gather("g", "bar")
            s.tail.append("L_retryg:\n" + "\n".join(f"global_load_dwordx4 v[{48+4*p}:{51+4*p}], v7, s[30:31] offset:{(p-4)*1024} sc1" for p in range(8)) + "\ns_branch L_chkg")
        else:
            e("global_load_dword v12, v11, s[8:9] sc1\ns_waitcnt vmcnt(0)")
            gather("g", None)
        e("v_mov_b32 v49, v48\nv_permlane32_swap_b32 v48, v49")
        e("v_lshlrev_b32 v50, 16, v48\nv_and_b32 v51, 0xffff0000, v48\nv_lshlrev_b32 v54, 16, v49\nv_and_b32 v55, 0xffff0000, v49")
        e(f"v_mul_f32 v52, {f2u(-1.4426950408889634)}, v50\nv_mul_f32 v53, {f2u(-1.4426950408889634)}, v51\nv_exp_f32 v52, v52\nv_exp_f32 v53, v53")
        e("v_add_f32 v52, 1.0, v52\nv_add_f32 v53, 1.0, v53\nv_rcp_f32 v52, v52\nv_rcp_f32 v53, v53")
        s.rbf(52); s.rbf(53)
        e("v_mul_f32 v52, v52, v54\nv_mul_f32 v53, v53, v55\nv_cvt_pk_bf16_f32 v52, v52, v52\nv_cvt_pk_bf16_f32 v53, v53, v53\nv_and_b32 v14, 0xff, v14")
        e(f"ds_write_b64 v14, v[52:53] offset:{L_H}\ns_waitcnt lgkmcnt(0)")
        s.stamp(6)
        if late:
            e("s_cmp_lt_u32 s50, 40\ns_cbranch_scc1 L_RED2")
            if st: e("s_barrier\ns_barrier")
            s.end()
        e("L_H1end:\ns_cmp_lt_u32 s50, 40\ns_cbranch_scc1 L_RED")
        if st:
            e("s_barrier\ns_barrier\ns_barrier\ns_barrier")
            if late: e("s_cmp_lt_u32 s5, 5\ns_cbranch_scc1 L_stamp\ns_barrier")
        s.end()
        e("L_H0b:")
        e(f"v_lshlrev_b32 v12, 2, v1\nv_mov_b32 v13, 0\nds_write_b32 v12, v48 offset:{L_Q}")
        if o["fast"]:
            e("v_min3_u32 v16, v50, v54, v58\nv_max3_u32 v17, v50, v54, v58\nv_min3_u32 v16, v16, v62, v66\nv_max3_u32 v17, v17, v62, v66")
            e("v_min3_u32 v16, v16, v70, v74\nv_max3_u32 v17, v17, v70, v74\nv_min3_u32 v16, v16, v78, v46\nv_max3_u32 v17, v17, v78, v46")
            e("v_cmp_ne_u32 s[58:59], v16, v17")
        e("s_waitcnt lgkmcnt(0)")
        if o["fast"]:
            e("s_nop 2\ns_cmp_eq_u64 s[58:59], 0\ns_cbranch_scc0 L_thru\nL_thrudone:")
            s.tail.append("L_thru:\n" + thru.format("L_thrudone"))
        e("s_barrier")
        e("s_barrier")
        for k in range(4): e(f"ds_read_b128 v[{16+4*k}:{19+4*k}], v13 offset:{L_ML+16*k}")
        e("s_waitcnt lgkmcnt(0)")
        s.stamp(6)
        e("v_max3_f32 v12, v16, v18, v20\nv_max3_f32 v12, v12, v22, v24\nv_max3_f32 v12, v12, v26, v28\nv_max_f32 v12, v12, v30")
        for k in range(8): e(f"v_sub_f32 v{16+2*k}, v{16+2*k}, v12")
        for k in range(8): e(f"v_mul_f32 v{16+2*k}, {LOG2E}, v{16+2*k}")
        for k in range(8): e(f"v_exp_f32 v{16+2*k}, v{16+2*k}")
        e("v_mul_f32 v15, v16, v17")
        for k in range(1, 8): e(f"v_fmac_f32 v15, v{16+2*k}, v{17+2*k}")
        e(f"v_log_f32 v46, v15\nv_rcp_f32 v15, v15\nv_fmac_f32 v46, {LOG2E}, v12")
        for k in range(8): e(f"v_mul_f32 v{16+2*k}, v{16+2*k}, v15")
        s.stamp(7)
        if st: e("s_waitcnt lgkmcnt(0)")
        e("s_barrier")
        for k in range(8): e(f"ds_read_b64 v[{48+2*k}:{49+2*k}], v14 offset:{L_OW+512*k}")
        for k in range(8):
            e(f"s_waitcnt lgkmcnt({7-k})")
            op = "v_mul_f32" if k == 0 else "v_fmac_f32"
            e(f"{op} v44, v{16+2*k}, v{48+2*k}\n{op} v45, v{16+2*k}, v{49+2*k}")
        if o["fast"]:
            e("s_cmp_eq_u64 s[58:59], 0\ns_cbranch_scc0 L_slow2\nglobal_store_dwordx4 v8, v[44:47], s[30:31]\nL_done2:")
            s.tail.append("L_slow2:\nglobal_store_dwordx4 v8, v[44:47], s[30:31] sc1\ns_branch L_done2")
        else: e("global_store_dwordx4 v8, v[44:47], s[30:31] sc1")
        if o["nb"] >= 0: e("s_barrier")
        s.stamp(8)
        if st: e("s_waitcnt lgkmcnt(0)")
        if o["late"]: e("s_cmp_lt_u32 s5, 5\ns_cbranch_scc1 L_nobh\ns_barrier\nL_nobh:")
        e("s_barrier")
        for k in range(8): e(f"ds_read_b64 v[{48+2*k}:{49+2*k}], v14 offset:{L_OUT+512*k}")
        for k in (1, 2, 3, 5, 6, 7):
            e(f"s_waitcnt lgkmcnt({7-k})")
            d = 48 if k < 4 else 56
            e(f"v_add_f32 v{d}, v{d}, v{48+2*k}\nv_add_f32 v{d+1}, v{d+1}, v{49+2*k}")
        e("s_cmp_lt_u32 s5, 5\ns_cbranch_scc0 L_pubB\nv_add_f32 v44, v48, v56\nv_add_f32 v45, v49, v57")
        e(f"global_store_dwordx4 v9, v[44:47], s[30:31] {o['stf']}")
        s.stamp(10)
        if o["wb"]: e("s_cmp_lt_u32 s2, 8\ns_cbranch_scc0 L_nowb\nbuffer_wbl2 sc1\nL_nowb:")
        s.end()
        e("L_pubB:\ns_cmp_ge_u32 s4, 27\ns_cbranch_scc1 L_pubBend\nv_mov_b32 v51, v47\nv_mov_b32 v59, v47")
        e("global_store_dwordx4 v9, v[48:51], s[30:31] sc1\ns_cmp_eq_u32 s5, 7\ns_cbranch_scc1 L_pubBend\nglobal_store_dwordx4 v10, v[56:59], s[30:31] sc1")
        e("L_pubBend:")
        s.stamp(9)
        s.end()

        def rload(b, off, ldf):
            for k in range(4): e(f"global_load_dwordx4 v[{b+4*k}:{b+3+4*k}], v{off}, s[30:31] offset:{1024*k} {ldf}")
        def rcheck(b, dst):
            e(f"v_min3_u32 v12, v{b+3}, v{b+7}, v47\nv_max3_u32 v13, v{b+3}, v{b+7}, v47\nv_min3_u32 v12, v12, v{b+11}, v{b+15}\nv_max3_u32 v13, v13, v{b+11}, v{b+15}")
            e(f"v_cmp_ne_u32 {dst}, v12, v13")
        def rsum(b):
            e(f"v_add_f32 v{b}, v{b}, v{b+4}\nv_add_f32 v{b+1}, v{b+1}, v{b+5}\nv_add_f32 v{b+8}, v{b+8}, v{b+12}\nv_add_f32 v{b+9}, v{b+9}, v{b+13}\nv_add_f32 v{b}, v{b}, v{b+8}\nv_add_f32 v{b+1}, v{b+1}, v{b+9}")
            e(f"v_permlane16_swap_b32 v{b}, v{b+1}\nv_add_f32 v{b}, v{b}, v{b+1}")
            e(f"v_add_f32_dpp v{b}, v{b}, v{b} row_ror:8 {DPP}")
            e(f"v_mov_b32 v{b+1}, v{b}\nv_permlane32_swap_b32 v{b}, v{b+1}\nv_add_f32 v{b}, v{b}, v{b+1}")
            e(f"v_cvt_pk_bf16_f32 v{b}, v{b}, v{b}\nv_and_b32 v{b}, 0xffff0000, v{b}")
        e("L_RED:")
        e("s_barrier\ns_barrier\ns_barrier")
        e("L_RED2:")
        if o["late"]: e("s_barrier")
        e(f"s_lshl_b32 s36, s50, 12\ns_add_u32 s36, s36, {X3}\nv_add_u32 v4, s36, v5\nv_add_u32 v6, {X3B-X3}, v4")
        e("s_mov_b32 s52, 0xffffff\ns_mov_b32 s53, 0\nv_and_b32 v12, 16, v1\nv_sub_u32 v12, 16, v12\ns_waitcnt vmcnt(0)\nv_lshlrev_b32 v40, v12, v40\nv_and_b32 v40, 0xffff0000, v40")
        e("v_bfe_u32 v12, v1, 4, 1\nv_lshl_add_u32 v11, v12, 1, v11")
        e("s_barrier")
        e(f"s_mov_b32 s39, {SPIN}\nL_poll3b:")
        rload(64, 6, "sc1")
        if o["joint"]: rload(48, 4, o["ldf3"])
        e(f"s_sub_u32 s39, s39, 1\ns_cbranch_scc1 L_got3b\ns_waitcnt vmcnt({4 if o['joint'] else 0})")
        e("v_cndmask_b32 v79, v47, v79, s[52:53]")
        rcheck(64, "vcc")
        e("s_waitcnt vmcnt(0)\ns_cbranch_vccnz L_poll3b")
        e("L_got3b:\ns_waitcnt vmcnt(0)")
        if o["joint"]:
            rcheck(48, "vcc")
            e("s_cbranch_vccz L_sumb")
        rload(48, 4, o["ldf3"])
        e("L_sumb:\nv_cndmask_b32 v76, 0, v76, s[52:53]\nv_cndmask_b32 v77, 0, v77, s[52:53]")
        rsum(64)
        e(f"s_mov_b32 s39, {SPIN}\ns_branch L_chk3\nL_poll3:")
        rload(48, 4, o["ldf3"])
        e("L_chk3:\ns_sub_u32 s39, s39, 1\ns_cbranch_scc1 L_got3\ns_waitcnt vmcnt(0)")
        rcheck(48, "vcc")
        e("s_cbranch_vccnz L_poll3\nL_got3:\ns_waitcnt vmcnt(0)")
        s.stamp(11)
        rsum(48)
        e("v_add_f32 v48, v48, v40\nv_cvt_pk_bf16_f32 v48, v48, v48\nv_and_b32 v48, 0xffff0000, v48\nv_add_f32 v48, v48, v64\nv_cvt_pk_bf16_f32 v48, v48, v48")
        e(f"s_mov_b64 exec, 0xff00ff\nglobal_store_short v11, v48, s[26:27] {o['outf']}")
        e("s_cmp_eq_u32 s50, 0\ns_cbranch_scc0 L_Rend")
        e("s_mov_b64 exec, 1\nv_mov_b32 v12, 0\nglobal_store_dword v12, v47, s[30:31] sc1")
        e("L_Rend:")
        if o.get("pad"):
            e(f"L_padw:\ns_memrealtime s[92:93]\ns_waitcnt lgkmcnt(0)\ns_sub_u32 s92, s92, s90\ns_cmp_lt_u32 s92, {o['pad']}\ns_cbranch_scc1 L_padw")
        if st:
            e("s_mov_b64 exec, -1\ns_waitcnt vmcnt(0)")
            s.stamp(12)
            e("L_stamp:\ns_waitcnt lgkmcnt(0)\ns_sleep 127")
            e("s_getreg_b32 s56, hwreg(HW_REG_HW_ID, 0, 16)\ns_getreg_b32 s57, hwreg(HW_REG_XCC_ID, 0, 4)\ns_lshl_b32 s57, s57, 16\ns_or_b32 s56, s56, s57")
            e("v_mov_b32 v9, 0\nv_writelane_b32 v9, s56, 0")
            for i in range(14): e(f"v_writelane_b32 v9, s{60+2*i}, {i+1}")
            e(f"s_mul_i32 s56, s2, 10\ns_add_u32 s56, s56, s3\ns_lshl_b32 s56, s56, 6\ns_add_u32 s56, s56, 0x4000000")
            e("v_lshlrev_b32 v10, 2, v1\nv_add_u32 v10, s56, v10\ns_mov_b64 exec, 0xffff\nglobal_store_dword v10, v9, s[30:31]")
        e("L_exit:\ns_endpgm")
        for t in s.tail: e(t)
        e(f""".section .rodata,"a"
.p2align 6
.amdhsa_kernel {KN}
  .amdhsa_next_free_vgpr {o['vg']}
  .amdhsa_next_free_sgpr 96
  .amdhsa_accum_offset {o['vg']}
  .amdhsa_group_segment_fixed_size 0
  .amdhsa_kernarg_size 96
  .amdhsa_user_sgpr_count 2
  .amdhsa_user_sgpr_kernarg_segment_ptr 1
  .amdhsa_system_sgpr_workgroup_id_x 1
  .amdhsa_float_denorm_mode_32 3
.end_amdhsa_kernel""")
        t = "\n".join(s.L)
        t = t.replace("WARMJUMP", "\n".join(f"s_cmp_eq_u32 s7, {k}\ns_cbranch_scc1 L_pad{k}" for k in range(s.npad)))
        return hz.fix(t) + "\n"

if __name__ == "__main__":
    out = sys.argv[1]; o = {}
    for a in sys.argv[2:]:
        k, v = a.split("=")
        o[k] = int(v) if v.lstrip("-").isdigit() else v.replace("+", " ")
    open(out, "w").write(G5(**o).build())
```

```python
import sys, struct
import hz
from gen import G, KN, f2u, LOG2E, DPP, X1Q, X1G, X2, X3, SPIN
L_XN, L_ML, L_Q, L_H, L_P1, L_OW, L_OUT = 0, 512, 576, 832, 1088, 1088 + 4096, 1088 + 8192
LDS_USED = L_OUT + 4096
RW, RK, RV, RO = 48, 68, 100, 132
MF = "v_mfma_f32_16x16x32_bf16"

X3B = X3 + 0x28000

class G5(G):
    def __init__(s, **o):
        d = dict(nt="nt", stamps=False, lds=LDS_USED, ackwait=1, W=3, kq=16, kx=3, WO=3, vg=152, prio=0, nk0=0, prew=0, fast=1, h64=0, asy0=0, asy1=0, asyinv=0, touch=0, pipe=0, WV=0, vfrom=4, tries=3, late=1, joint=1, wb=0, pollat=0,
                 warm=0, outf="", sprio=0, ng=8, nost=0, nb=-1, ne=0, stf1='sc1', stf2='sc1', dual=0, ldf='sc1', ldf3='sc1', stf='sc1', W0=4)
        d.update(o); super().__init__(**d); s.npad = 0; s.tail = []
    def pad(s, inline):
        if not s.o["warm"]: return
        k = s.npad; s.npad += 1
        if inline: s.e(f"s_branch L_over{k}")
        s.e(f"L_pad{k}:\ns_branch L_warmed")
        if inline: s.e(f"L_over{k}:")
    def build(s):
        e = s.e; o = s.o; nt = o["nt"]; W = o["W"]; WO = o["WO"]; nk0 = o["nk0"]; st = o["stamps"]; W0 = o["W0"] or W
        e(f"; @launch grid=(256,1,1) block=(640,1,1) lds={o['lds']}")
        e('.amdgcn_target "amdgcn-amd-amdhsa--gfx950"\n.text')
        e(f".globl {KN}\n.p2align 8\n.type {KN},@function\n{KN}:")
        s.stamp(0)
        if o.get("pad"): e("s_memrealtime s[90:91]")
        e("s_load_dwordx16 s[8:23], s[0:1], 0\ns_load_dwordx8 s[24:31], s[0:1], 64")
        e("v_readfirstlane_b32 s3, v0\ns_lshr_b32 s5, s2, 5\ns_cmp_ge_u32 s5, 8\ns_cbranch_scc1 L_exit")
        e("s_lshr_b32 s3, s3, 6\nv_and_b32 v1, 63, v0\ns_and_b32 s4, s2, 31\ns_sub_u32 s7, s3, 2\ns_cbranch_scc0 L_S")
        e("s_mul_i32 s6, s5, 80\nv_lshlrev_b32 v5, 4, v1\nv_lshlrev_b32 v6, 2, v1\nv_add_lshl_u32 v7, v1, s6, 1\ns_waitcnt lgkmcnt(0)")
        e("global_load_dwordx4 v[16:19], v5, s[8:9]\nglobal_load_dword v20, v6, s[8:9] offset:1024")
        e("global_load_ushort v21, v7, s[8:9]\nglobal_load_ushort v22, v7, s[8:9] offset:32")
        e("s_branch L_H")
        e("L_S:")
        e("s_movk_i32 s34, 0x2000\ns_cmp_ge_u32 s7, 4\ns_cselect_b32 s36, 3, 4\ns_cmovk_i32 s34, 0xd80\ns_cselect_b32 s38, 27, 32")
        e("v_bfe_u32 v14, v0, s36, 4\nv_bfe_u32 v6, v0, 0, s36\ns_mul_i32 s35, s34, 5\nv_lshl_add_u32 v4, s5, 4, v14\ns_lshl_b32 s37, s4, s36")
        e("v_mul_u32_u24 v4, s35, v4\nv_add_u32 v6, s37, v6\nv_lshl_add_u32 v4, v6, 4, v4")
        e("s_cmp_ge_u32 s7, 6\ns_waitcnt lgkmcnt(0)\ns_cselect_b64 s[18:19], s[22:23], s[20:21]\ns_cmp_ge_u32 s7, 4\ns_cselect_b64 s[18:19], s[18:19], s[14:15]")
        e("s_cmp_ge_u32 s4, s38\ns_cbranch_scc1 L_now1")
        ko = [t * 1024 for t in range(8)]; vo = [(t // 4) * 4096 + (t % 4) * 256 for t in range(8)]
        KL = [(f"v_xor_b32 v5, {ko[t]^ko[t-1]}, v5\n" if t else "") + f"global_load_dwordx4 v[{RK+4*t}:{RK+3+4*t}], v5, s[10:11] {nt}" for t in range(8)]
        VL = [(f"v_xor_b32 v6, {vo[t]^vo[t-1]}, v6\n" if t else "") + f"global_load_dwordx4 v[{RV+4*t}:{RV+3+4*t}], v6, s[12:13] {nt}" for t in range(8)]
        WL = [("v_add_u32 v4, s34, v4\n" if u else "") + f"global_load_dwordx4 v[{RW+4*u}:{RW+3+4*u}], v4, s[18:19] {nt}" for u in range(5)]
        OL = [f"global_load_dwordx4 v[{RO+4*u}:{RO+3+4*u}], v7, s[18:19] offset:{u*1280} {nt}" for u in range(4)]
        ne = o["ne"]; nb = o["nb"]
        loads = KL[:nk0] + WL + KL[nk0:] + OL[:ne] + VL + OL[ne:]
        iV0 = 13 + ne
        iW4 = nk0 + 4
        issued = [0]
        def win(k): return W0 if k <= iW4 else (W if k < iV0 + o['vfrom'] else (o['WV'] or W) if k < iV0 + 8 else WO)
        def issue_to(k, pace=True):
            while issued[0] <= k:
                i = issued[0]
                pre, _, ld = loads[i].rpartition("\n")
                if pre: e(pre)
                if pace and i >= win(i):
                    if o["asy0"] <= i < o["asy1"]: e(f"s_waitcnt vmcnt({win(i)})\ns_cbranch_vccnz L_asy{i}\ns_waitcnt vmcnt({win(i)-1})\nL_asy{i}:")
                    else: e(f"s_waitcnt vmcnt({win(i)-1})")
                e(ld); issued[0] += 1
        def wait_for(k):
            assert k < issued[0]
            e(f"s_waitcnt vmcnt({issued[0]-1-k})")
        issue_to(W0 - 1)
        s.stamp(1)
        issue_to(iW4)
        e("L_now1:")
        if st:
            for i in range(2, 14): e(f"s_mov_b32 s{60+2*i}, 0")
        e("s_load_dword s33, s[30:31], 0\ns_mov_b32 s32, s4")
        if o["asy1"]: e(f"s_getreg_b32 s36, hwreg(HW_REG_XCC_ID, 2, 1)\ns_cmp_eq_u32 s36, {1-o['asyinv']}\ns_cselect_b64 vcc, -1, 0")
        e("s_xor_b32 s37, s7, s5\ns_xor_b32 s37, s37, s4\ns_and_b32 s37, s37, 7\ns_and_b32 s38, s37, 3\ns_lshl2_add_u32 s37, s37, s38")
        e("s_lshl2_add_u32 s36, s4, 3\ns_lshl3_add_u32 s36, s36, s5\ns_lshl3_add_u32 s36, s36, s7\ns_lshl_b32 s36, s36, 5\ns_or_b32 s36, s36, s37\ns_lshl_b32 s36, s36, 8")
        e("v_and_b32 v3, 15, v0\nv_and_b32 v5, 12, v0\nv_lshrrev_b32 v2, 4, v1\nv_and_b32 v6, 3, v0\nv_lshl_add_u32 v47, v2, 2, v6\nv_lshlrev_b32 v47, 4, v47\nv_lshl_add_u32 v5, v5, 6, v47\nv_xor_b32 v5, s36, v5")
        e("v_lshlrev_b32 v6, 10, v2\nv_lshl_add_u32 v6, v3, 4, v6\nv_xor_b32 v6, s36, v6")
        issue_to(iW4 + 1)
        s.masks()
        issue_to(iW4 + 1)
        e("s_cmp_ge_u32 s7, 4\ns_cselect_b32 s36, 9, 8\ns_lshl_b32 s37, s7, 9\ns_and_b32 s38, s7, 1\ns_lshl_b32 s38, s38, 10\ns_and_b32 s39, s7, 2\ns_lshl_b32 s39, s39, 7\ns_add_u32 s38, s38, s39\ns_add_u32 s38, s38, 0x800")
        e("s_cmp_ge_u32 s7, 4\ns_cselect_b32 s37, s38, s37")
        e("v_lshrrev_b32 v12, 3, v3\nv_lshlrev_b32 v12, s36, v12\nv_and_b32 v13, 7, v3\nv_lshl_add_u32 v12, v13, 5, v12\nv_and_b32 v13, 1, v2\nv_lshl_add_u32 v12, v13, 4, v12\nv_add_u32 v13, s37, v12")
        e("v_lshlrev_b32 v14, 5, v14\ns_mov_b32 s54, 0x00ff00ff\ns_mov_b32 s55, 0xff00ff00")
        issue_to(nk0 + o["kx"] + W)
        e("s_barrier")
        e(f"ds_read_b128 v[40:43], v14 offset:{L_XN}\nds_read_b32 v44, v14 offset:{L_XN+16}\ns_waitcnt lgkmcnt(0)")
        for u in range(5):
            for k in range(4): e(f"v_and_b32 v{16+4*u+k}, v{40+u}, v{8+k}")
        issue_to(iW4 + W)
        wait_for(iW4)
        s.stamp(2)
        for u in range(5):
            e(f"{MF} v[40:43], v[{16+4*u}:{19+4*u}], v[{RW+4*u}:{RW+3+4*u}], {'0' if u == 0 else 'v[40:43]'}")
        e("s_mul_i32 s33, s33, 1664525\ns_add_u32 s33, s33, 1013904223\ns_mov_b64 exec, s[54:55]")
        for t in range(4):
            e(f"s_mov_b32 s{40+2*t}, {0x000f000f << (4*t)}\ns_mov_b32 s{41+2*t}, s{40+2*t}")
        e(f"ds_write_b128 v13, v[40:43] offset:{L_P1}\ns_mov_b64 exec, -1\ns_waitcnt lgkmcnt(0)\ns_barrier")
        issue_to(iW4 + W + 1)
        for c in range(1, 4):
            e(f"s_mov_b32 s{46+2*c}, {0x11111111 << c}\ns_mov_b32 s{47+2*c}, s{46+2*c}")
        e("s_lshl3_add_u32 s36, s4, s7\ns_and_b32 s37, s7, 3\ns_lshl2_add_u32 s37, s4, s37\ns_lshr_b32 s38, s7, 2\ns_lshl1_add_u32 s38, s5, s38\ns_sub_u32 s38, s38, 10")
        e("s_cmp_ge_u32 s4, 27\ns_cselect_b32 s38, 5, s38")
        e("s_cmp_lt_u32 s5, 5\ns_cselect_b64 s[18:19], s[16:17], s[24:25]\ns_cselect_b32 s36, s36, s37\ns_cselect_b32 s38, s5, s38")
        e(f"s_mul_i32 s36, s36, {16*1280}\ns_lshl_b32 s37, s38, 8\ns_add_u32 s36, s36, s37")
        e(f"v_mul_u32_u24 v7, {4*1280}, v2\nv_lshl_add_u32 v7, v3, 4, v7\nv_add_u32 v7, s36, v7")
        e("s_cmp_lt_u32 s38, 5\ns_cselect_b32 s36, -1, 0\nv_and_b32 v7, s36, v7")
        issue_to(iW4 + W + 2)
        e("s_lshl_b32 s36, s7, 9\nv_lshlrev_b32 v4, 5, v3\nv_lshl_add_u32 v4, v2, 4, v4\nv_add_u32 v4, s36, v4")
        e("s_lshl_b32 s36, s7, 3\nv_mov_b32 v12, s36\ns_and_b32 s36, s7, 3\ns_lshl_b32 s36, s36, 6\nv_lshl_add_u32 v14, v2, 4, s36")
        e(f"s_lshl_b32 s36, s4, 13\ns_lshl_b32 s37, s7, 7\ns_add_u32 s36, s36, s37\ns_add_u32 s36, s36, {X2}")
        e("v_lshrrev_b32 v13, 1, v3\nv_lshlrev_b32 v13, 10, v13\nv_lshl_add_u32 v13, v2, 5, v13\nv_and_b32 v45, 1, v3\nv_lshl_add_u32 v13, v45, 4, v13\nv_add_u32 v13, s36, v13")
        s.pad(True)
        kq = o["kq"]; nxt = [kq]
        def tick():
            nxt[0] += 1
            if nxt[0] <= (iV0 + 7 + WO - 1 if nb < 0 else iV0 + 7) and nxt[0] <= 24: issue_to(nxt[0])
        issue_to(kq)
        s.stamp(3)
        e("s_barrier")
        s.stamp(4)
        e(f"ds_read_b128 v[32:35], v47 offset:{L_Q}" + ("" if o["late"] else f"\nds_read_b128 v[{RW}:{RW+3}], v14 offset:{L_H}") + "\ns_waitcnt lgkmcnt(0)")
        for t in range(4):
            for k in range(4): e(f"v_cndmask_b32 v{16+4*t+k}, 0, v{32+k}, s[{40+2*t}:{41+2*t}]")
        wait_for(12)
        for t in range(4):
            for Gp in range(2):
                d = 36 + 4 * Gp; b = RK + 4 * (4 * Gp + t)
                e(f"{MF} v[{d}:{d+3}], v[{16+4*t}:{19+4*t}], v[{b}:{b+3}], {'0' if t == 0 else f'v[{d}:{d+3}]'}")
        tick()
        for c in range(1, 4):
            e(f"v_cndmask_b32 v36, v36, v{36+c}, s[{46+2*c}:{47+2*c}]\nv_cndmask_b32 v40, v40, v{40+c}, s[{46+2*c}:{47+2*c}]")
        for qp in ("[1,0,3,2]", "[2,3,0,1]"):
            e(f"v_add_f32_dpp v36, v36, v36 quad_perm:{qp} {DPP}\nv_add_f32_dpp v40, v40, v40 quad_perm:{qp} {DPP}")
        e("v_cvt_pk_bf16_f32 v37, v36, v40\nv_lshlrev_b32 v36, 16, v37\nv_and_b32 v40, 0xffff0000, v37")
        e(f"v_mul_f32 v36, {f2u(128**-0.5)}, v36\nv_mul_f32 v40, {f2u(128**-0.5)}, v40")
        e("v_cvt_pk_bf16_f32 v37, v36, v40\nv_lshlrev_b32 v36, 16, v37\nv_and_b32 v40, 0xffff0000, v37")
        tick()
        e(f"v_max_f32 v44, v36, v40\nv_max_f32_dpp v44, v44, v44 row_ror:4 {DPP}\nv_max_f32_dpp v44, v44, v44 row_ror:8 {DPP}")
        s.xrows("v_max_f32", 44, 37)
        e(f"v_sub_f32 v36, v36, v44\nv_sub_f32 v40, v40, v44\nv_mul_f32 v36, {LOG2E}, v36\nv_mul_f32 v40, {LOG2E}, v40\nv_exp_f32 v36, v36\nv_exp_f32 v40, v40")
        e(f"v_add_f32 v45, v36, v40\nv_cvt_pk_bf16_f32 v38, v36, v36\nv_cvt_pk_bf16_f32 v39, v40, v40")
        e(f"v_add_f32_dpp v45, v45, v45 row_ror:4 {DPP}\nv_add_f32_dpp v45, v45, v45 row_ror:8 {DPP}")
        s.xrows("v_add_f32", 45, 37)
        e(f"ds_write_b64 v12, v[44:45] offset:{L_ML}")
        tick()
        if not o["late"]: e("s_waitcnt lgkmcnt(0)\ns_barrier")
        for t in range(8):
            for k in range(4): e(f"v_and_b32_dpp v{RK+4*t+k}, v{38+t//4}, v{8+k} row_newbcast:{4*(t%4)} {DPP}")
            if t == 3:
                tick()
                if o["late"]:
                    issue_to(iV0 + 7)
                    e("s_waitcnt lgkmcnt(0)\ns_barrier")
        e(f"v_mov_b32 v47, s33\ns_mov_b32 s39, {SPIN}")
        s.stamp(5)
        if o["sprio"]: e(f"s_setprio {o['sprio']}")
        for t in range(8):
            k = iV0 + t
            tgt = max(i for i in range(25) if i - win(i) <= k)
            if nb >= 0: tgt = min(tgt, iV0 + 7)
            issue_to(tgt)
            if nb >= 0 and issued[0] == iV0 + 8: issue_to(iV0 + 7 + nb, pace=False)
            wait_for(k)
            e(f"{MF} v[40:43], v[{RK+4*t}:{RK+3+4*t}], v[{RV+4*t}:{RV+3+4*t}], {'0' if t == 0 else 'v[40:43]'}")
        s.stamp(6)
        e("s_mov_b32 exec_hi, 0")
        e(f"ds_write_b128 v4, v[40:43] offset:{L_OW}\ns_mov_b32 exec_hi, -1\ns_waitcnt lgkmcnt(0)\ns_barrier")
        if nb >= 0: e("s_barrier")
        issue_to(24, pace=nb < 0)
        e("s_cmp_lt_u32 s5, 5\ns_cbranch_scc1 L_attn")
        if o["late"]: e(f"s_barrier\nds_read_b128 v[{RW}:{RW+3}], v14 offset:{L_H}\ns_waitcnt lgkmcnt(0)")
        for u in range(4):
            for k in range(4): e(f"v_and_b32 v{16+4*u+k}, v{RW+u}, v{8+k}")
        for u in range(3):
            e(f"s_waitcnt vmcnt({min(3-u, 4-ne)})\n{MF} v[36:39], v[{16+4*u}:{19+4*u}], v[{RO+4*u}:{RO+3+4*u}], {'0' if u == 0 else 'v[36:39]'}")
        e("s_waitcnt vmcnt(0)")
        s.stamp(7)
        e("s_branch L_lastmf")
        e("L_attn:")
        e(f"s_waitcnt vmcnt({o['pollat']})")
        s.stamp(7)
        e("L_poll2:")
        e(f"global_load_dwordx4 v[32:35], v13, s[30:31] {o['ldf']}")
        e("s_sub_u32 s39, s39, 1\ns_cbranch_scc1 L_got2\ns_waitcnt vmcnt(0)")
        e("v_cmp_ne_u32 vcc, v35, v47\ns_cbranch_vccnz L_poll2")
        e("L_got2:\ns_waitcnt vmcnt(0)")
        s.stamp(8)
        steps = ["quad_perm:[2,3,0,1]", "row_ror:4", "row_ror:8"]
        e(f"v_max_f32_dpp v12, v34, v34 {steps[0]} {DPP}\nv_max_f32_dpp v12, v12, v12 {steps[1]} {DPP}\nv_max_f32_dpp v12, v12, v12 {steps[2]} {DPP}")
        e("v_sub_f32 v34, v34, v12\nv_exp_f32 v34, v34\nv_mul_f32 v32, v32, v34\nv_mul_f32 v33, v33, v34")
        for stp in steps:
            for v in (34, 32, 33): e(f"v_add_f32_dpp v{v}, v{v}, v{v} {stp} {DPP}")
        e("v_rcp_f32 v34, v34\nv_mul_f32 v32, v32, v34\nv_mul_f32 v33, v33, v34\nv_cvt_pk_bf16_f32 v32, v32, v32\nv_cvt_pk_bf16_f32 v33, v33, v33")
        for u in range(4):
            for k in range(4): e(f"v_and_b32_dpp v{16+4*u+k}, v{32+u%2}, v{8+k} row_newbcast:{u//2} {DPP}")
            if u >= 1: e(f"{MF} v[36:39], v[{12+4*u}:{15+4*u}], v[{RO+4*u-4}:{RO+4*u-1}], {'0' if u == 1 else 'v[36:39]'}")
        e("s_nop 0\nL_lastmf:")
        e(f"{MF} v[36:39], v[28:31], v[{RO+12}:{RO+15}], v[36:39]")
        e("s_mov_b32 exec_hi, 0")
        e(f"ds_write_b128 v4, v[36:39] offset:{L_OUT}\ns_waitcnt lgkmcnt(0)\ns_barrier")
        if st: e("s_mov_b64 exec, -1")
        s.stamp(9)
        s.end()

        e("L_H:")
        if st:
            for i in range(1, 14): e(f"s_mov_b32 s{60+2*i}, 0")
        if o["prio"]: e(f"s_setprio {o['prio']}")
        e("s_load_dword s33, s[30:31], 0\ns_mov_b32 s32, s4")
        e(f"s_lshl_b32 s36, s4, 13\ns_lshl_b32 s37, s5, 10\ns_add_u32 s36, s36, s37\ns_add_u32 s36, s36, {X2}\nv_add_u32 v8, s36, v5")
        e("s_lshl_b32 s36, s5, 1\ns_sub_u32 s36, s36, 5\ns_cmp_lt_u32 s5, 5\ns_cselect_b32 s36, s5, s36")
        h64 = o["h64"]; NR = 80 if h64 else 40
        e(f"s_lshl_b32 s36, s36, {15+h64}\ns_lshl_b32 s37, s4, 7\ns_add_u32 s36, s36, s37\ns_add_u32 s36, s36, {X3}")
        e(f"v_lshrrev_b32 v9, {3-h64}, v1\nv_lshlrev_b32 v9, 12, v9\nv_and_b32 v12, {7>>h64}, v1\nv_lshl_add_u32 v9, v12, 4, v9\nv_add_u32 v9, s36, v9\nv_add_u32 v10, {0x8000<<h64}, v9")
        e(f"s_sub_u32 s50, s2, {256-NR}\ns_min_u32 s36, s50, {NR-1}\ns_lshl_b32 s36, s36, {5-h64}\nv_lshl_add_u32 v11, v12, 2, s36")
        e("s_cmp_eq_u32 s3, 0\ns_cbranch_scc0 L_H1")
        s.stamp(1)
        e("v_mul_u32_u24 v12, 205, v1\nv_lshrrev_b32 v12, 10, v12\nv_mad_u32_u24 v12, v12, 12, v6")
        e("v_add_u32 v13, 16, v1\nv_mul_u32_u24 v14, 205, v13\nv_lshrrev_b32 v14, 10, v14\nv_lshlrev_b32 v13, 2, v13\nv_mad_u32_u24 v13, v14, 12, v13")
        e("s_waitcnt vmcnt(2)")
        for i in range(5):
            e(f"v_lshlrev_b32 v{24+2*i}, 16, v{16+i}\nv_and_b32 v{25+2*i}, 0xffff0000, v{16+i}")
        e("v_add_f32 v34, v24, v25")
        for i in range(2, 10): e(f"v_add_f32 v34, v34, v{24+i}")
        s.wsum(34, 35)
        e(f"v_mul_f32 v34, {f2u(1/640)}, v34")
        for i in range(10): e(f"v_sub_f32 v{24+i}, v{24+i}, v34")
        e("v_mul_f32 v36, v24, v24")
        for i in range(1, 10): e(f"v_fmac_f32 v36, v{24+i}, v{24+i}")
        s.wsum(36, 35)
        e(f"v_mul_f32 v36, {f2u(1/640)}, v36")
        s.rbf(34); s.rbf(36)
        e(f"v_add_f32 v36, {f2u(1e-5)}, v36"); s.rbf(36)
        e("v_sqrt_f32 v36, v36"); s.rbf(36)
        e("v_rcp_f32 v36, v36\ns_waitcnt vmcnt(0)")
        e("v_lshlrev_b32 v21, 16, v21\nv_lshlrev_b32 v22, 16, v22\nv_sub_f32 v21, v21, v34\nv_sub_f32 v22, v22, v34")
        s.rbf(21); s.rbf(22)
        e("v_mul_f32 v21, v21, v36\nv_mul_f32 v22, v22, v36\nv_cvt_pk_bf16_f32 v21, v21, v21\nv_cvt_pk_bf16_f32 v22, v22, v22")
        e(f"ds_write_b32 v12, v21 offset:{L_XN}\nds_write_b32 v13, v22 offset:{L_XN}")
        if o["prew"]:
            e("s_waitcnt lgkmcnt(0)\nv_mov_b32 v47, s33")
            if o["prew"] & 1: e(f"global_store_dwordx4 v8, v[44:47], s[30:31] {o['stf2']}")
            if o["prew"] & 2: e("s_cmp_lt_u32 s5, 5\ns_cbranch_scc0 L_Hx\nglobal_store_dwordx4 v9, v[44:47], s[30:31] sc1")
        e("s_branch L_Hx")
        e("L_H1:")
        if o["touch"]:
            e("s_lshl2_add_u32 s36, s4, 3\ns_lshl3_add_u32 s36, s36, s5\ns_lshl_b32 s36, s36, 16")
            if o["touch"] & 1: e("s_load_dword s40, s[10:11], s36\ns_load_dword s41, s[12:13], s36")
            e(f"s_mul_i32 s36, s4, {128*1280}\ns_min_u32 s37, s4, 26\ns_mul_i32 s37, s37, {64*1280}")
            if o["touch"] & 2: e("s_load_dword s42, s[16:17], s36\ns_load_dword s43, s[24:25], s37\ns_load_dword s44, s[26:27], 0")
        e("s_waitcnt vmcnt(0)\nglobal_load_dword v40, v11, s[8:9]")
        e("L_Hx:")
        s.tag()
        s.stamp(2)
        e("s_barrier")
        e(f"s_mul_i32 s36, s3, {X1G-X1Q}\ns_lshl_b32 s37, s4, 13\ns_add_u32 s36, s36, s37\ns_add_u32 s36, s36, {X1Q}\ns_lshl_b32 s37, s5, 10\ns_add_u32 s37, s37, s36\ns_add_u32 s36, s36, 0x1000")
        e(f"v_add_u32 v6, s37, v5\nv_add_u32 v7, s36, v5\nv_mov_b32 v47, s33\nv_lshlrev_b32 v14, 3, v1\nv_add_u32 v15, {X1G-X1Q}, v6")
        e(f"s_getreg_b32 s56, hwreg(HW_REG_XCC_ID, 0, 4)\nv_mov_b32 v35, s33\nv_mov_b32 v46, s56\ns_mov_b32 s39, {SPIN}\ns_mov_b32 s57, {o['tries'] if o['fast'] else 0}")
        e("s_cmp_eq_u32 s3, 0\ns_cbranch_scc0 L_H1b")
        e("s_barrier")
        for k in range(8): e(f"ds_read_b64 v[{16+2*k}:{17+2*k}], v14 offset:{L_P1+512*k}")
        e("s_waitcnt lgkmcnt(4)" if not st else "s_waitcnt lgkmcnt(0)")
        e("v_add_f32 v16, v16, v18\nv_add_f32 v17, v17, v19\nv_add_f32 v20, v20, v22\nv_add_f32 v21, v21, v23\nv_add_f32 v44, v16, v20\nv_add_f32 v45, v17, v21")
        fl = "" if o["fast"] else "sc1"
        e(f"global_store_dwordx4 v6, v[44:47], s[30:31] {fl}\ns_waitcnt lgkmcnt(0)")
        e("v_add_f32 v24, v24, v26\nv_add_f32 v25, v25, v27\nv_add_f32 v28, v28, v30\nv_add_f32 v29, v29, v31\nv_add_f32 v32, v24, v28\nv_add_f32 v33, v25, v29")
        e(f"s_cmp_ge_u32 s4, 27\ns_cbranch_scc1 L_nogu\nglobal_store_dwordx4 v15, v[32:35], s[30:31] {fl}\nL_nogu:")
        s.stamp(3)
        if o["ackwait"]: e("s_waitcnt vmcnt(0)")
        s.stamp(4)
        def gather(lbl, retry):
            e(f"L_poll{lbl}:")
            for p in range(8): e(f"global_load_dwordx4 v[{48+4*p}:{51+4*p}], v7, s[30:31] offset:{(p-4)*1024} sc1")
            if retry == "bar": e(f"s_barrier\nL_chk{lbl}:")
            e(f"s_sub_u32 s39, s39, 1\ns_cbranch_scc1 L_got{lbl}")
            e("s_waitcnt vmcnt(0)")
            e("v_min3_u32 v13, v51, v55, v59\nv_max3_u32 v12, v51, v55, v59\nv_min3_u32 v13, v13, v63, v67\nv_max3_u32 v12, v12, v63, v67")
            e("v_min3_u32 v13, v13, v71, v75\nv_max3_u32 v12, v12, v71, v75\nv_min3_u32 v13, v13, v79, v47\nv_max3_u32 v12, v12, v79, v47")
            e(f"v_cmp_ne_u32 vcc, v13, v12\ns_cbranch_vccnz L_{'retry' if retry else 'poll'}{lbl}")
            e(f"L_got{lbl}:\ns_waitcnt vmcnt(0)")
            s.stamp(5)
            for p in range(1, 8): e(f"v_add_f32 v48, v48, v{48+4*p}\nv_add_f32 v49, v49, v{49+4*p}")
            e("v_cvt_pk_bf16_f32 v48, v48, v49")
        gather("1", "pub")
        thru = "global_store_dwordx4 v6, v[44:47], s[30:31] sc1\ns_cmp_ge_u32 s4, 27\ns_cbranch_scc1 {0}\nglobal_store_dwordx4 v15, v[32:35], s[30:31] sc1\ns_branch {0}"
        s.tail.append("L_retry1:\ns_sub_u32 s57, s57, 1\ns_cmp_eq_u32 s57, 0\ns_cbranch_scc0 L_poll1\n" + thru.format("L_poll1"))
        e("s_branch L_H0b")
        e("L_H1b:")
        late = o["late"]
        e("s_barrier")
        e("s_cmp_lt_u32 s5, 5\ns_cselect_b32 s36, 32, s4\ns_cmp_ge_u32 s36, 27\ns_cbranch_scc1 L_H1end")
        if late:
            e("s_barrier\ns_barrier")
            gather("g", "bar")
            s.tail.append("L_retryg:\n" + "\n".join(f"global_load_dwordx4 v[{48+4*p}:{51+4*p}], v7, s[30:31] offset:{(p-4)*1024} sc1" for p in range(8)) + "\ns_branch L_chkg")
        else:
            e("global_load_dword v12, v11, s[8:9] sc1\ns_waitcnt vmcnt(0)")
            gather("g", None)
        e("v_mov_b32 v49, v48\nv_permlane32_swap_b32 v48, v49")
        e("v_lshlrev_b32 v50, 16, v48\nv_and_b32 v51, 0xffff0000, v48\nv_lshlrev_b32 v54, 16, v49\nv_and_b32 v55, 0xffff0000, v49")
        e(f"v_mul_f32 v52, {f2u(-1.4426950408889634)}, v50\nv_mul_f32 v53, {f2u(-1.4426950408889634)}, v51\nv_exp_f32 v52, v52\nv_exp_f32 v53, v53")
        e("v_add_f32 v52, 1.0, v52\nv_add_f32 v53, 1.0, v53\nv_rcp_f32 v52, v52\nv_rcp_f32 v53, v53")
        s.rbf(52); s.rbf(53)
        e("v_mul_f32 v52, v52, v54\nv_mul_f32 v53, v53, v55\nv_cvt_pk_bf16_f32 v52, v52, v52\nv_cvt_pk_bf16_f32 v53, v53, v53\nv_and_b32 v14, 0xff, v14")
        e(f"ds_write_b64 v14, v[52:53] offset:{L_H}\ns_waitcnt lgkmcnt(0)")
        s.stamp(6)
        if late:
            e(f"s_cmp_lt_u32 s50, {NR}\ns_cbranch_scc1 L_RED2")
            if st: e("s_barrier\ns_barrier")
            s.end()
        e(f"L_H1end:\ns_cmp_lt_u32 s50, {NR}\ns_cbranch_scc1 L_RED")
        if st:
            e("s_barrier\ns_barrier\ns_barrier\ns_barrier")
            if late: e("s_cmp_lt_u32 s5, 5\ns_cbranch_scc1 L_stamp\ns_barrier")
        s.end()
        e("L_H0b:")
        e(f"v_lshlrev_b32 v12, 2, v1\nv_mov_b32 v13, 0\nds_write_b32 v12, v48 offset:{L_Q}")
        if o["fast"]:
            e("v_min3_u32 v16, v50, v54, v58\nv_max3_u32 v17, v50, v54, v58\nv_min3_u32 v16, v16, v62, v66\nv_max3_u32 v17, v17, v62, v66")
            e("v_min3_u32 v16, v16, v70, v74\nv_max3_u32 v17, v17, v70, v74\nv_min3_u32 v16, v16, v78, v46\nv_max3_u32 v17, v17, v78, v46")
            e("v_cmp_ne_u32 s[58:59], v16, v17")
        e("s_waitcnt lgkmcnt(0)")
        if o["fast"]:
            e("s_nop 2\ns_cmp_eq_u64 s[58:59], 0\ns_cbranch_scc0 L_thru\nL_thrudone:")
            s.tail.append("L_thru:\n" + thru.format("L_thrudone"))
        e("s_barrier")
        e("s_barrier")
        for k in range(4): e(f"ds_read_b128 v[{16+4*k}:{19+4*k}], v13 offset:{L_ML+16*k}")
        e("s_waitcnt lgkmcnt(0)")
        s.stamp(6)
        e("v_max3_f32 v12, v16, v18, v20\nv_max3_f32 v12, v12, v22, v24\nv_max3_f32 v12, v12, v26, v28\nv_max_f32 v12, v12, v30")
        for k in range(8): e(f"v_sub_f32 v{16+2*k}, v{16+2*k}, v12")
        for k in range(8): e(f"v_mul_f32 v{16+2*k}, {LOG2E}, v{16+2*k}")
        for k in range(8): e(f"v_exp_f32 v{16+2*k}, v{16+2*k}")
        e("v_mul_f32 v15, v16, v17")
        for k in range(1, 8): e(f"v_fmac_f32 v15, v{16+2*k}, v{17+2*k}")
        e(f"v_log_f32 v46, v15\nv_rcp_f32 v15, v15\nv_fmac_f32 v46, {LOG2E}, v12")
        for k in range(8): e(f"v_mul_f32 v{16+2*k}, v{16+2*k}, v15")
        s.stamp(7)
        if st: e("s_waitcnt lgkmcnt(0)")
        e("s_barrier")
        for k in range(8): e(f"ds_read_b64 v[{48+2*k}:{49+2*k}], v14 offset:{L_OW+512*k}")
        for k in range(8):
            e(f"s_waitcnt lgkmcnt({7-k})")
            op = "v_mul_f32" if k == 0 else "v_fmac_f32"
            e(f"{op} v44, v{16+2*k}, v{48+2*k}\n{op} v45, v{16+2*k}, v{49+2*k}")
        if o["fast"]:
            e("s_cmp_eq_u64 s[58:59], 0\ns_cbranch_scc0 L_slow2\nglobal_store_dwordx4 v8, v[44:47], s[30:31]\nL_done2:")
            s.tail.append("L_slow2:\nglobal_store_dwordx4 v8, v[44:47], s[30:31] sc1\ns_branch L_done2")
        else: e("global_store_dwordx4 v8, v[44:47], s[30:31] sc1")
        if o["nb"] >= 0: e("s_barrier")
        s.stamp(8)
        if st: e("s_waitcnt lgkmcnt(0)")
        if o["late"]: e("s_cmp_lt_u32 s5, 5\ns_cbranch_scc1 L_nobh\ns_barrier\nL_nobh:")
        e("s_barrier")
        for k in range(8): e(f"ds_read_b64 v[{48+2*k}:{49+2*k}], v14 offset:{L_OUT+512*k}")
        for k in (1, 2, 3, 5, 6, 7):
            e(f"s_waitcnt lgkmcnt({7-k})")
            d = 48 if k < 4 else 56
            e(f"v_add_f32 v{d}, v{d}, v{48+2*k}\nv_add_f32 v{d+1}, v{d+1}, v{49+2*k}")
        e("s_cmp_lt_u32 s5, 5\ns_cbranch_scc0 L_pubB\nv_add_f32 v44, v48, v56\nv_add_f32 v45, v49, v57")
        e(f"global_store_dwordx4 v9, v[44:47], s[30:31] {o['stf']}")
        s.stamp(10)
        if o["wb"]: e("s_cmp_lt_u32 s2, 8\ns_cbranch_scc0 L_nowb\nbuffer_wbl2 sc1\nL_nowb:")
        s.end()
        e("L_pubB:\ns_cmp_ge_u32 s4, 27\ns_cbranch_scc1 L_pubBend\nv_mov_b32 v51, v47\nv_mov_b32 v59, v47")
        e("global_store_dwordx4 v9, v[48:51], s[30:31] sc1\ns_cmp_eq_u32 s5, 7\ns_cbranch_scc1 L_pubBend\nglobal_store_dwordx4 v10, v[56:59], s[30:31] sc1")
        e("L_pubBend:")
        s.stamp(9)
        s.end()

        NL = 2 if h64 else 4
        def rload(b, off, ldf):
            for k in range(NL): e(f"global_load_dwordx4 v[{b+4*k}:{b+3+4*k}], v{off}, s[30:31] offset:{(4096//NL)*k} {ldf}")
        def rcheck(b, dst):
            e(f"v_min3_u32 v12, v{b+3}, v{b+7}, v47\nv_max3_u32 v13, v{b+3}, v{b+7}, v47")
            if not h64: e(f"v_min3_u32 v12, v12, v{b+11}, v{b+15}\nv_max3_u32 v13, v13, v{b+11}, v{b+15}")
            e(f"v_cmp_ne_u32 {dst}, v12, v13")
        def rsum(b):
            e(f"v_add_f32 v{b}, v{b}, v{b+4}\nv_add_f32 v{b+1}, v{b+1}, v{b+5}")
            if not h64: e(f"v_add_f32 v{b+8}, v{b+8}, v{b+12}\nv_add_f32 v{b+9}, v{b+9}, v{b+13}\nv_add_f32 v{b}, v{b}, v{b+8}\nv_add_f32 v{b+1}, v{b+1}, v{b+9}")
            e(f"v_permlane16_swap_b32 v{b}, v{b+1}\nv_add_f32 v{b}, v{b}, v{b+1}")
            e(f"v_mov_b32 v{b+1}, v{b}\nv_permlane32_swap_b32 v{b}, v{b+1}\nv_add_f32 v{b}, v{b}, v{b+1}")
            e(f"v_add_f32_dpp v{b}, v{b}, v{b} row_ror:8 {DPP}")
            if h64: e(f"v_add_f32_dpp v{b}, v{b}, v{b} row_ror:4 {DPP}")
            e(f"v_cvt_pk_bf16_f32 v{b}, v{b}, v{b}\nv_and_b32 v{b}, 0xffff0000, v{b}")
        e("L_RED:")
        e("s_barrier\ns_barrier\ns_barrier")
        e("L_RED2:")
        if o["late"]: e("s_barrier")
        e(f"s_lshl_b32 s36, s50, 12\ns_add_u32 s36, s36, {X3}")
        if h64: e("v_and_b32 v4, 60, v1\nv_lshl_add_u32 v5, v4, 4, v5")
        e(f"v_add_u32 v4, s36, v5\nv_add_u32 v6, {(X3B-X3) << h64}, v4")
        e(("s_mov_b32 s52, -1\ns_movk_i32 s53, 0xfff\n" if h64 else "s_mov_b32 s52, 0xffffff\ns_mov_b32 s53, 0\n") + "v_and_b32 v12, 16, v1\nv_sub_u32 v12, 16, v12\ns_waitcnt vmcnt(0)\nv_lshlrev_b32 v40, v12, v40\nv_and_b32 v40, 0xffff0000, v40")
        e("v_bfe_u32 v12, v1, 4, 1\nv_lshl_add_u32 v11, v12, 1, v11")
        e("s_barrier")
        e(f"s_mov_b32 s39, {SPIN}\nL_poll3b:")
        rload(64, 6, "sc1")
        if o["joint"]: rload(48, 4, o["ldf3"])
        e(f"s_sub_u32 s39, s39, 1\ns_cbranch_scc1 L_got3b\ns_waitcnt vmcnt({NL if o['joint'] else 0})")
        lb = 64 + 4 * (NL - 1)
        e(f"v_cndmask_b32 v{lb+3}, v47, v{lb+3}, s[52:53]")
        rcheck(64, "vcc")
        e("s_waitcnt vmcnt(0)\ns_cbranch_vccnz L_poll3b")
        e("L_got3b:\ns_waitcnt vmcnt(0)")
        if o["joint"]:
            rcheck(48, "vcc")
            e("s_cbranch_vccz L_sumb")
        rload(48, 4, o["ldf3"])
        e(f"L_sumb:\nv_cndmask_b32 v{lb}, 0, v{lb}, s[52:53]\nv_cndmask_b32 v{lb+1}, 0, v{lb+1}, s[52:53]")
        rsum(64)
        if o["pipe"]:
            n = o["pipe"]; sets = [48] + [80 + 16 * i for i in range(n - 1)]
            e(f"s_mov_b32 s39, {SPIN}\ns_waitcnt vmcnt(0)")
            rcheck(48, "vcc"); e("s_cbranch_vccz L_got3")
            for b in sets[:-1]: rload(b, 4, o["ldf3"])
            e("L_poll3:")
            for i, b in enumerate(sets):
                rload(sets[i - 1], 4, o["ldf3"])
                e(f"s_waitcnt vmcnt({NL*(n-1)})")
                rcheck(b, "vcc")
                e(f"s_cbranch_vccz L_got3_{i}")
            e("s_sub_u32 s39, s39, 1\ns_cbranch_scc0 L_poll3")
            for i, b in list(enumerate(sets))[1:]:
                e(f"L_got3_{i}:")
                rsum(b); e(f"v_mov_b32 v41, v{b}\ns_branch L_fin")
            e("L_got3_0:\nL_got3:")
        else:
            e(f"s_mov_b32 s39, {SPIN}\ns_branch L_chk3\nL_poll3:")
            rload(48, 4, o["ldf3"])
            e("L_chk3:\ns_sub_u32 s39, s39, 1\ns_cbranch_scc1 L_got3\ns_waitcnt vmcnt(0)")
            rcheck(48, "vcc")
            e("s_cbranch_vccnz L_poll3\nL_got3:\ns_waitcnt vmcnt(0)")
        rsum(48)
        e("v_mov_b32 v41, v48\nL_fin:")
        s.stamp(11)
        e("v_add_f32 v41, v41, v40\nv_cvt_pk_bf16_f32 v41, v41, v41\nv_and_b32 v41, 0xffff0000, v41\nv_add_f32 v41, v41, v64\nv_cvt_pk_bf16_f32 v41, v41, v41")
        e(f"s_mov_b64 exec, {0xf000f if h64 else 0xff00ff}\nglobal_store_short v11, v41, s[26:27] {o['outf']}")
        e("s_cmp_eq_u32 s50, 0\ns_cbranch_scc0 L_Rend")
        e("s_mov_b64 exec, 1\nv_mov_b32 v12, 0\nglobal_store_dword v12, v47, s[30:31] sc1")
        e("L_Rend:")
        if o.get("pad"):
            e(f"L_padw:\ns_memrealtime s[92:93]\ns_waitcnt lgkmcnt(0)\ns_sub_u32 s92, s92, s90\ns_cmp_lt_u32 s92, {o['pad']}\ns_cbranch_scc1 L_padw")
        if st:
            e("s_mov_b64 exec, -1\ns_waitcnt vmcnt(0)")
            s.stamp(12)
            e("L_stamp:\ns_waitcnt lgkmcnt(0)\ns_sleep 127")
            e("s_getreg_b32 s56, hwreg(HW_REG_HW_ID, 0, 16)\ns_getreg_b32 s57, hwreg(HW_REG_XCC_ID, 0, 4)\ns_lshl_b32 s57, s57, 16\ns_or_b32 s56, s56, s57")
            e("v_mov_b32 v9, 0\nv_writelane_b32 v9, s56, 0")
            for i in range(14): e(f"v_writelane_b32 v9, s{60+2*i}, {i+1}")
            e(f"s_mul_i32 s56, s2, 10\ns_add_u32 s56, s56, s3\ns_lshl_b32 s56, s56, 6\ns_add_u32 s56, s56, 0x4000000")
            e("v_lshlrev_b32 v10, 2, v1\nv_add_u32 v10, s56, v10\ns_mov_b64 exec, 0xffff\nglobal_store_dword v10, v9, s[30:31]")
        e("L_exit:\ns_endpgm")
        for t in s.tail: e(t)
        e(f""".section .rodata,"a"
.p2align 6
.amdhsa_kernel {KN}
  .amdhsa_next_free_vgpr {o['vg']}
  .amdhsa_next_free_sgpr 96
  .amdhsa_accum_offset {o['vg']}
  .amdhsa_group_segment_fixed_size 0
  .amdhsa_kernarg_size 96
  .amdhsa_user_sgpr_count 2
  .amdhsa_user_sgpr_kernarg_segment_ptr 1
  .amdhsa_system_sgpr_workgroup_id_x 1
  .amdhsa_float_denorm_mode_32 3
.end_amdhsa_kernel""")
        t = "\n".join(s.L)
        t = t.replace("WARMJUMP", "\n".join(f"s_cmp_eq_u32 s7, {k}\ns_cbranch_scc1 L_pad{k}" for k in range(s.npad)))
        return hz.fix(t) + "\n"

if __name__ == "__main__":
    out = sys.argv[1]; o = {}
    for a in sys.argv[2:]:
        k, v = a.split("=")
        o[k] = int(v) if v.lstrip("-").isdigit() else v.replace("+", " ")
    open(out, "w").write(G5(**o).build())
```
